```python
import torch

def _softmax(x, axis=-1):
    return torch.softmax(x, dim=axis)
def _gelu(x):
    return torch.nn.functional.gelu(x, approximate="tanh")
def _silu(x):
    return torch.nn.functional.silu(x)
def _sigmoid(x):
    return torch.sigmoid(x)
def _layernorm(x, axis=-1, eps=1e-5):
    m = x.mean(dim=axis, keepdim=True)
    v = x.var(dim=axis, keepdim=True, unbiased=False)
    return (x - m) / torch.sqrt(v + eps)
def _scatter_add(tgt, idx, src, axis=0):
    return tgt.clone().index_add_(axis, idx, src)
def _segment_sum(src, seg, n):
    out = torch.zeros((n,) + src.shape[1:], dtype=src.dtype)
    return out.index_add_(0, seg, src)
def _pad(x, pw):
    flat = tuple(v for pair in reversed(pw) for v in pair)
    return torch.nn.functional.pad(x, flat)

kernel_name = 'concat_heads__mha_block_cached__gqa_block_cached__near_ridge'

def setup_inputs():

    _w = (lambda a: (lambda t: t.to(torch.bfloat16) if t.is_floating_point() else t)(torch.as_tensor(a)))
    def _A_setup():
        B, Sq, D = 16, 112, 576
        H, Sk, Dh = 32, 512, 128
        return {
            "x": _w((lambda *s: torch.randn(*s, dtype=torch.bfloat16) * 0.8)(B, Sq, D)),
            "k_cache": _w((lambda *s: torch.randn(*s, dtype=torch.bfloat16) * 0.8)(B, H, Sk, Dh)),
            "v_cache": _w((lambda *s: torch.randn(*s, dtype=torch.bfloat16) * 0.05)(B, H, Sk, Dh)),
            "wq": _w((lambda *s: torch.randn(*s, dtype=torch.bfloat16) * 0.8)(D, H * Dh) * (D ** -0.5)),
            "wo": _w((lambda *s: torch.randn(*s, dtype=torch.bfloat16) * 0.05)(H * Dh, D) * ((H * Dh) ** -0.5)),
        }
    _A_in = _A_setup()

    def _B_setup():
        B, Sq, D = 16, 112, 576
        Hq, Hkv, Sk, Dh = 32, 32, 512, 128
        assert Hq % Hkv == 0, (Hq, Hkv)
        return {
            "x": _w((lambda *s: torch.randn(*s, dtype=torch.bfloat16) * 0.8)(B, Sq, D)),
            "k_cache": _w((lambda *s: torch.randn(*s, dtype=torch.bfloat16) * 0.8)(B, Hkv, Sk, Dh)),
            "v_cache": _w((lambda *s: torch.randn(*s, dtype=torch.bfloat16) * 0.05)(B, Hkv, Sk, Dh)),
            "wq": _w((lambda *s: torch.randn(*s, dtype=torch.bfloat16) * 0.8)(D, Hq * Dh) * (D ** -0.5)),
            "wo": _w((lambda *s: torch.randn(*s, dtype=torch.bfloat16) * 0.05)(Hq * Dh, D) * ((Hq * Dh) ** -0.5)),
        }
    _B_in = _B_setup()

    return {
        "A_x": _A_in["x"],
        "A_k_cache": _A_in["k_cache"],
        "A_v_cache": _A_in["v_cache"],
        "A_wq": _A_in["wq"],
        "A_wo": _A_in["wo"],
        "B_x": _B_in["x"],
        "B_k_cache": _B_in["k_cache"],
        "B_v_cache": _B_in["v_cache"],
        "B_wq": _B_in["wq"],
        "B_wo": _B_in["wo"],
    }

def reference(A_x, A_k_cache, A_v_cache, A_wq, A_wo, B_x, B_k_cache, B_v_cache, B_wq, B_wo):
    def _A_ref(x, k_cache, v_cache, wq, wo):
        B, Sq, D = x.shape
        H, Dh = 32, 128
        q = (lambda x, *d: x.permute(*d))((x @ wq).reshape(B, Sq, H, Dh), 0, 2, 1, 3)
        scores = torch.einsum("bhqd,bhkd->bhqk", q, k_cache) * (Dh ** -0.5)
        p = _softmax(scores, axis=-1)
        o = torch.einsum("bhqk,bhkd->bhqd", p, v_cache)
        return (lambda x, *d: x.permute(*d))(o, 0, 2, 1, 3).reshape(B, Sq, H * Dh) @ wo

    def _B_ref(x, k_cache, v_cache, wq, wo):
        B, Sq, D = x.shape
        Hq, Dh = 32, 128
        Hkv = k_cache.shape[1]
        rep = Hq // Hkv
        q = (lambda x, *d: x.permute(*d))((x @ wq).reshape(B, Sq, Hq, Dh), 0, 2, 1, 3)
        k = (lambda x, n, axis: torch.repeat_interleave(x, n, dim=axis))(k_cache, rep, axis=1)
        v = (lambda x, n, axis: torch.repeat_interleave(x, n, dim=axis))(v_cache, rep, axis=1)
        scores = torch.einsum("bhqd,bhkd->bhqk", q, k) * (Dh ** -0.5)
        p = _softmax(scores, axis=-1)
        o = torch.einsum("bhqk,bhkd->bhqd", p, v)
        return (lambda x, *d: x.permute(*d))(o, 0, 2, 1, 3).reshape(B, Sq, Hq * Dh) @ wo

    a = _A_ref(A_x, A_k_cache, A_v_cache, A_wq, A_wo)
    b = _B_ref(B_x, B_k_cache, B_v_cache, B_wq, B_wo)
    return torch.concatenate([a, b], axis=-1)
```

```python
KN = "concat_heads__mha_block_cached__gqa_block_cached__near_ridge_kernel"

class Asm:
    def __init__(self):
        self.lines = []
        self._uid = 0
    def __call__(self, s):
        for l in s.strip("\n").split("\n"):
            self.lines.append("    " + l.strip())
    def label(self, l):
        self.lines.append(l + ":")
    def uid(self, p="L"):
        self._uid += 1
        return f"{p}_{self._uid}"
    def comment(self, c):
        self.lines.append("    ; " + c)
    def text(self):
        return "\n".join(self.lines) + "\n"

HEADER_COMMENT = """; generated kernel
"""

def kernel_begin(name):
    return f""".globl {name}
.p2align 8
.type {name},@function
{name}:
"""

def kernel_desc(name, vgpr, sgpr, accum):
    return f""".p2align 6
.amdhsa_kernel {name}
  .amdhsa_next_free_vgpr {vgpr}
  .amdhsa_next_free_sgpr {sgpr}
  .amdhsa_accum_offset {accum}
  .amdhsa_group_segment_fixed_size 0
  .amdhsa_kernarg_size 104
  .amdhsa_user_sgpr_count 2
  .amdhsa_user_sgpr_kernarg_segment_ptr 1
  .amdhsa_system_sgpr_workgroup_id_x 1
.end_amdhsa_kernel
"""

def make_file(launches, kernels):
    out = []
    if len(launches) == 1 and launches[0][0] == KN:
        n, g, b, lds = launches[0]
        out.append(f"; @launch grid=({g},1,1) block=({b},1,1) lds={lds}\n")
    else:
        for n, g, b, lds in launches:
            out.append(f"; @launch kernel={n} grid=({g},1,1) block=({b},1,1) lds={lds}\n")
    out.append('.amdgcn_target "amdgcn-amd-amdhsa--gfx950"\n.text\n')
    for n, body, v, s, a in kernels:
        out.append(kernel_begin(n))
        out.append(body)
    out.append('.section .rodata,"a"\n')
    for n, body, v, s, a in kernels:
        out.append(kernel_desc(n, v, s, a))
    return "".join(out)
```

```python
import sys
from asmlib import *

class Cfg:
    D = 5
    NBUF = 8
    NK = 5; NV = 5; NW = 5
    nt_kv = True
    warm = True
    THR = 0x47800000
    kv_spread = 2
    dbg = None
    nunits = 4
    st_flags = ""
    w_nt = False

C = Cfg()

V_WARM = 0
V_KA = 1
V_VA = 9
V_WQA = 13
V_XA = 17
V_WOA = 19
V_DM = 21
V_L = 25
V_TS = 26
V_T = 27
V_DUMMY = 31
V_OACC = 32
V_QF = 96
V_S = 128
V_NEGM = 160
V_P = 176
V_AB = 192
V_DMV = V_DM
V_LANE = 46
V_OUT16 = 224

S_WAVE = 3
SRD_A = 8
SRD_B = 12
SRD_WS = 16
S_U = 20
S_UNIT = 21
S_UNITN = 22
S_REGION = 23
S_T = 24
S_REGV = 25
S_QPIECE = 26
S_QSTAGE = 27
S_QUSTR = 28
S_QRUN = 29
S_OBASE = 30
S_THR = 31
S_SCALE = 32
S_WARM = 33
S_WARM2 = 34
S_WARMU = 35
SRD_C = 36
S_QBASE = 40
S_P = 44

def lds_layout():
    LDS_K = 0
    LDS_V = C.NK * 8192
    LDS_W = LDS_V + C.NV * 8192
    return LDS_K, LDS_V, LDS_W, LDS_W + C.NW * 16384

def vr(b, n=1):
    return f"v{b}" if n == 1 else f"v[{b}:{b+n-1}]"
def ar(b, n=1):
    return f"a{b}" if n == 1 else f"a[{b}:{b+n-1}]"
def outacc(tc):
    return ar(16*tc, 16) if tc < 16 else vr(V_OUT16 + 16*(tc-16), 16)

MFMA = "v_mfma_f32_32x32x16_bf16"

class MF:
    def __init__(self, dst, bop, cop, reads, tiles, idx, extra=None):
        self.dst = dst; self.bop = bop; self.cop = cop
        self.reads = reads
        self.tiles = tiles
        self.extra = extra or []
        self.idx = idx

class Filler:
    __slots__ = ("ins", "cost", "ready", "due")
    def __init__(self, ins, cost=4, ready=0, due=10**9):
        self.ins = ins; self.cost = cost; self.ready = ready; self.due = due

def wo_slot(s):
    return (s + (C.NW - (9 % C.NW))) % C.NW if False else (s - (9 - C.NW)) % C.NW

def build_mfmas():
    M = []
    marks = {}
    marks["Q"] = len(M)
    for s in range(18):
        base = (s % C.NW) * 8192
        tile = ("WQ", s)
        order = [(k, T) for k in range(2) for T in range(4)] if s < 17 else [(k, T) for T in range(4) for k in range(2)]
        seen = set()
        for (k, T) in order:
            ks = 2*s + k
            xb = V_S + 4*(ks % 3)
            rd = [("tr", 0, V_WQA+T, base + k*4096, tile), ("tr", 2, V_WQA+T, base + k*4096 + 1024, tile)]
            ex = []
            if ks not in seen:
                seen.add(ks)
                ex = [(xb, V_XA + k, base, tile)]
            cop = "0" if ks == 0 else vr(V_OACC+16*T, 16)
            M.append(MF(vr(V_OACC+16*T, 16), vr(xb, 4), cop, rd, {tile}, ("Q", ks, T), ex))
    def qk(t, czero):
        for ks in range(8):
            tile = ("K", t)
            rd = [("b128", 0, V_KA+ks, (t % C.NK)*8192, tile)]
            S = V_S + 16*(t & 1)
            cop = (("0" if czero else vr(V_NEGM, 16)) if ks == 0 else vr(S, 16))
            M.append(MF(vr(S, 16), vr(V_QF+4*ks, 4), cop, rd, {tile}, ("QK", t, ks)))
    def pv(t, tmajor=False):
        order = [(kk, T) for kk in range(2) for T in range(4)] if not tmajor else [(kk, T) for T in range(4) for kk in range(2)]
        for (kk, T) in order:
            tile = ("V", t)
            base = (t % C.NV)*8192 + kk*4096
            rd = [("tr", 0, V_VA+T, base, tile), ("tr", 2, V_VA+T, base + 2048, tile)]
            cop = "0" if (t == 0 and kk == 0) else vr(V_OACC+16*T, 16)
            M.append(MF(vr(V_OACC+16*T, 16), vr(V_P + 8*(t & 1) + 4*kk, 4), cop, rd, {tile}, ("PV", t, kk, T)))
    marks["pre"] = len(M)
    qk(0, True)
    for t in range(16):
        marks[("it", t)] = len(M)
        if t + 1 <= 15:
            qk(t+1, t == 0)
        if t >= 1:
            pv(t-1)
    marks["post"] = len(M)
    pv(15, True)
    marks["OUT"] = len(M)
    for s in range(9):
        base = wo_slot(s) * 8192
        tile = ("WO", s)
        for ks in range(8):
            for tcl in range(2):
                tc = 2*s + tcl
                ad = (V_WOA + tcl) if ks < 4 else (V_NEGM + tcl)
                o = base + (ks % 4)*2048
                rd = [("tr", 0, ad, o, tile), ("tr", 2, ad, o + 1024, tile)]
                M.append(MF(outacc(tc), vr(V_QF+4*ks, 4), outacc(tc), rd, {tile}, ("OUT", s, ks, tcl)))
    marks["end"] = len(M)
    return M, marks

def softmax_ops(t):
    S = V_S + 16*(t & 1); P = V_P + 8*(t & 1)
    T = [V_T + i for i in range(4)]
    ops = []
    def e(k): ops.append((f"v_exp_f32 v{T[k%4]}, v{S+k}", 8))
    e(0); e(1)
    for j in range(8):
        if 2*j+2 < 16:
            e(2*j+2); e(2*j+3)
        a, b = T[(2*j) % 4], T[(2*j+1) % 4]
        if j == 7:
            ops.append(("s_nop 0", 4))
        if j == 0:
            ops.append((f"v_add_f32 v{V_TS}, v{a}, v{b}", 4))
        else:
            ops.append((f"v_add_f32 v{V_TS}, v{V_TS}, v{a}", 4))
            ops.append((f"v_add_f32 v{V_TS}, v{V_TS}, v{b}", 4))
        ops.append((f"v_cvt_pk_bf16_f32 v{P+j}, v{a}, v{b}", 4))
    return ops

def maxtree(S, dst, tmp):
    ops = []
    ops.append(f"v_max3_f32 v{dst}, v{S}, v{S+1}, v{S+2}")
    ops.append(f"v_max3_f32 v{tmp}, v{S+3}, v{S+4}, v{S+5}")
    ops.append(f"v_max3_f32 v{dst}, v{dst}, v{S+6}, v{S+7}")
    ops.append(f"v_max3_f32 v{tmp}, v{tmp}, v{S+8}, v{S+9}")
    ops.append(f"v_max3_f32 v{dst}, v{dst}, v{S+10}, v{S+11}")
    ops.append(f"v_max3_f32 v{tmp}, v{tmp}, v{S+12}, v{S+13}")
    ops.append(f"v_max3_f32 v{dst}, v{dst}, v{S+14}, v{S+15}")
    ops.append(f"v_max_f32 v{dst}, v{dst}, v{tmp}")
    ops.append(f"v_mov_b32 v{tmp}, v{dst}")
    ops.append("s_nop 1")
    ops.append(f"v_permlane32_swap_b32 v{dst}, v{tmp}")
    ops.append("s_nop 1")
    ops.append(f"v_max_f32 v{dst}, v{dst}, v{tmp}")
    return ops

def build_fillers(M, marks, rare_labels):
    F = []
    idx = {m.idx: i for i, m in enumerate(M)}
    for T in range(4):
        rdy = idx[("Q", 35, T)] + 2
        due = idx[("QK", 0, 2*T)] - 2
        A = V_OACC + 16*T
        for j in range(8):
            F.append(Filler(f"v_mul_f32 v{A+2*j}, s{S_SCALE}, v{A+2*j}", 4, rdy, due))
            F.append(Filler(f"v_mul_f32 v{A+2*j+1}, s{S_SCALE}, v{A+2*j+1}", 4, rdy, due))
            F.append(Filler(f"v_cvt_pk_bf16_f32 v{V_QF+8*T+j}, v{A+2*j}, v{A+2*j+1}", 4, rdy, due))
    rdy = idx[("QK", 0, 7)] + 2
    it0_end = marks[("it", 1)] - 1
    for op in maxtree(V_S, V_T, V_T+1):
        F.append(Filler(op, 4, rdy, it0_end))
    F.append(Filler(f"v_sub_f32 v{V_T}, 0, v{V_T}", 4, rdy, it0_end))
    for k in range(16):
        F.append(Filler(f"v_add_f32 v{V_S+k}, v{V_S+k}, v{V_T}", 4, rdy, it0_end))
    for k in range(16):
        F.append(Filler(f"v_mov_b32 v{V_NEGM+k}, v{V_T}", 4, rdy, it0_end))
    F.append(Filler(f"v_mov_b32 v{V_L}, 0", 4, rdy, it0_end))
    for t in range(16):
        start = marks[("it", t)]
        end = (marks[("it", t+1)] if t < 15 else marks["post"]) - 1
        for (ins, cost) in softmax_ops(t):
            F.append(Filler(ins, cost, start if t else rdy, end))
        if t == 0:
            F.append(Filler("s_nop 15", 4, end, end))
            for k in range(16):
                F.append(Filler(f"v_add_f32 v{V_S+16+k}, v{V_S+16+k}, v{V_NEGM+k}", 4, end, end))
        F.append(Filler(f"v_cmp_nge_f32 vcc, s{S_THR}, v{V_TS}", 4, end, end))
        lab = rare_labels[t]
        F.append(Filler(f"s_cbranch_vccnz {lab}", 4, end, end))
        F.append(Filler(f"{lab}_ret:", 0, end, end))
        F.append(Filler(f"v_add_f32 v{V_L}, v{V_L}, v{V_TS}", 4, end, end))
    p0 = marks["post"]
    F.append(Filler(f"v_add_u32 v{V_NEGM}, {C.NW*8192}, v{V_WOA}", 4, p0-1, p0+1))
    F.append(Filler(f"v_add_u32 v{V_NEGM+1}, {C.NW*8192}, v{V_WOA+1}", 4, p0-1, p0+1))
    F.append(Filler(f"v_mov_b32 v{V_T}, v{V_L}", 4, p0-1, p0+1))
    F.append(Filler("s_nop 1", 4, p0-1, p0+1))
    F.append(Filler(f"v_permlane32_swap_b32 v{V_L}, v{V_T}", 4, p0-1, p0+1))
    F.append(Filler("s_nop 1", 4, p0-1, p0+1))
    F.append(Filler(f"v_add_f32 v{V_L}, v{V_L}, v{V_T}", 4, p0-1, p0+1))
    F.append(Filler(f"v_rcp_f32 v{V_L}, v{V_L}", 8, p0-1, p0+1))
    F.append(Filler("s_nop 0", 4, p0-1, p0+1))
    for T in range(4):
        rdy = idx[("PV", 15, 1, T)] + 2
        due = idx[("OUT", 0, 2*T, 0)] - 2
        A = V_OACC + 16*T
        for j in range(8):
            F.append(Filler(f"v_mul_f32 v{A+2*j}, v{A+2*j}, v{V_L}", 4, rdy, due))
            F.append(Filler(f"v_mul_f32 v{A+2*j+1}, v{A+2*j+1}, v{V_L}", 4, rdy, due))
            F.append(Filler(f"v_cvt_pk_bf16_f32 v{V_QF+8*T+j}, v{A+2*j}, v{A+2*j+1}", 4, rdy, due))
    return F

def rare_code(a, t, lab):
    S = V_S + 16*(t & 1); S2 = V_S + 16*((t+1) & 1)
    a.label(lab)
    a("s_nop 15")
    a("s_nop 15")
    for op in maxtree(S, V_T, V_T+1):
        a(op)
    a(f"v_max_f32 v{V_T}, 0, v{V_T}")
    a(f"v_sub_f32 v{V_T+1}, 0, v{V_T}")
    a(f"v_exp_f32 v{V_T+1}, v{V_T+1}")
    a("s_nop 0")
    for k in range(64):
        a(f"v_mul_f32 v{V_OACC+k}, v{V_OACC+k}, v{V_T+1}")
    a(f"v_mul_f32 v{V_L}, v{V_L}, v{V_T+1}")
    for k in range(16):
        a(f"v_sub_f32 v{S+k}, v{S+k}, v{V_T}")
        a(f"v_sub_f32 v{S2+k}, v{S2+k}, v{V_T}")
        a(f"v_sub_f32 v{V_NEGM+k}, v{V_NEGM+k}, v{V_T}")
    for (ins, cost) in softmax_ops(t):
        a(ins)
    a("s_nop 1")
    a(f"s_branch {lab}_ret")

def rd_instr(rd, buf):
    kind, sel, addr, off, tile = rd
    if kind == "tr":
        return f"ds_read_b64_tr_b16 {vr(buf+sel, 2)}, v{addr} offset:{off}"
    return f"ds_read_b128 {vr(buf, 4)}, v{addr} offset:{off}"

def tile_items(role, tile, carried):
    kind, i = tile
    nt = " nt" if C.nt_kv else ""
    wnt = " nt" if C.w_nt else ""
    items = []
    if role == "KV" and kind in ("K", "V"):
        ubase = S_UNITN if carried else S_UNIT
        reg = S_REGION if kind == "K" else S_REGV
        slot = i % (C.NK if kind == "K" else C.NV)
        srd = SRD_A if kind == "K" else SRD_B
        for q in range(4):
            it = []
            if q == 0:
                it.append(f"s_add_u32 m0, s{reg}, {slot*8192}")
                it.append(f"s_add_u32 s{S_T}, s{ubase}, {i*8192}")
            vo = V_DM + q if kind == "K" else V_DMV
            it.append(f"buffer_load_dwordx4 v{vo}, s[{srd}:{srd+3}], s{S_T} offen offset:{q*1024}{nt} lds")
            items.append(it)
    if role == "W" and kind == "WQ":
        slot = i % C.NW
        for p in range(8):
            it = [f"s_add_u32 m0, s{S_REGION}, {slot*8192 + p*1024}"]
            if p == 0:
                if carried and i == 0:
                    it.append(f"s_mov_b32 s{S_QRUN}, s{S_QBASE}")
                it.append(f"s_mov_b32 s{S_T}, s{S_QRUN}")
                it.append(f"s_add_u32 s{S_QRUN}, s{S_QRUN}, s{S_QSTAGE}")
            else:
                it.append(f"s_add_u32 s{S_T}, s{S_T}, s{S_QPIECE}")
            it.append(f"buffer_load_dwordx4 v{V_DM}, s[{SRD_A}:{SRD_A+3}], s{S_T} offen{wnt} lds")
            items.append(it)
    if role == "W" and kind == "WO":
        slot = wo_slot(i)
        for p in range(8):
            it = [f"s_add_u32 m0, s{S_REGION}, {slot*8192 + p*1024}",
                  f"s_add_u32 s{S_T}, s{S_OBASE}, {i*128 + p*9216}",
                  f"buffer_load_dwordx4 v{V_DM+1}, s[{SRD_B}:{SRD_B+3}], s{S_T} offen{wnt} lds"]
            items.append(it)
    return items

def analyze(M):
    N = len(M); D = C.D
    fr = {}; lc = {}
    for i, m in enumerate(M):
        for rd in m.reads: fr.setdefault(rd[-1], i - D)
        for ex in m.extra: fr.setdefault(ex[-1], i - D)
        for tl in m.tiles: lc[tl] = i
    bars = set()
    for s in range(18): bars.add(fr[("WQ", s)] % N)
    for t in range(16): bars.add(fr[("K", t)] % N)
    bars.add(fr[("V", 14)] % N); bars.add(fr[("V", 15)] % N)
    for s in range(9): bars.add(fr[("WO", s)] % N)
    bars = sorted(bars)
    def last_bar_le(g):
        best = None
        for off in (-N, 0):
            for b in bars:
                if b + off <= g: best = b + off
        return best
    def first_bar_ge(g):
        for off in (0, N):
            for b in bars:
                if b + off >= g: return b + off
    def slot_of(tile):
        k, i = tile
        return {"WQ": ("W", i % C.NW), "WO": ("W", wo_slot(i)), "K": ("K", i % C.NK), "V": ("V", i % C.NV)}[k]
    tiles = sorted(fr.keys(), key=lambda t: fr[t])
    byslot = {}
    for tl in tiles: byslot.setdefault(slot_of(tl), []).append(tl)
    issue = {}
    for sl, lst in byslot.items():
        for j, tl in enumerate(lst):
            pred = lst[j-1]
            b = first_bar_ge(lc[pred] - 1)
            issue[tl] = (b, j == 0)
    need = {}
    for tl in tiles:
        b = last_bar_le(fr[tl])
        if b < 0:
            need.setdefault(b + N, []).append((tl, 1))
        else:
            need.setdefault(b, []).append((tl, 0))
    return fr, lc, bars, issue, need

def schedule_dma(role, M, issue, marks):
    N = len(M)
    pend = []
    for tl, (b, carried) in issue.items():
        its = tile_items(role, tl, carried)
        if its:
            pend.append((b, tl, carried, its))
    ev = []
    for (b, tl, carried, its) in pend:
        if b >= N:
            its = tile_items(role, tl, False)
            ev.append((b - N, tl, False, its))
        else:
            ev.append((b, tl, carried, its))
    order_key = lambda e: (e[0], 0 if e[1][0] in ("K", "WQ", "WO") else 1, e[1][1])
    ev.sort(key=order_key)
    extra = []
    if role == "KV" and C.warm:
        g0 = marks[("it", 1)] + 3
        extra.append((g0, ("warm", 0), False, [[f"buffer_load_dword v{V_DUMMY}, v{V_WARM}, s[{SRD_C}:{SRD_C+3}], s{S_WARM} offen"],
                                               [f"s_add_u32 s{S_T}, s{S_WARM}, s{S_WARM2}", f"buffer_load_dword v{V_DUMMY}, v{V_WARM}, s[{SRD_C}:{SRD_C+3}], s{S_T} offen"]]))
    ev = sorted(ev + extra, key=order_key)
    out = {}
    q = []
    ei = 0
    spread = C.kv_spread if role == "KV" else 1
    last = -10
    for g in range(N):
        while ei < len(ev) and ev[ei][0] <= g:
            b, tl, carried, its = ev[ei]
            for it in its: q.append((it, tl, carried))
            ei += 1
        npop = 0
        if q and (g - last >= spread or len(q) > 10):
            npop = 2 if len(q) > 16 else 1
        if q:
            npop = max(npop, -(-len(q) // (N - g)) if len(q) > (N - g - 1) * 1 and len(q) >= (N - g) else 0)
        for _ in range(min(npop, len(q))):
            out.setdefault(g, []).append(q.pop(0)); last = g
    assert not q, f"DMA queue not drained at end of body: {len(q)}"
    return out

def gen_body(a, role, M, marks, pfx):
    N = len(M); D = C.D
    fr, lc, bars, issue, need = analyze(M)
    dma = schedule_dma(role, M, issue, marks)
    rare = [f"{pfx}_rare{t}" for t in range(16)]
    F = build_fillers(M, marks, rare)
    mine = {"KV": ("K", "V"), "W": ("WQ", "WO")}[role]
    seq = []
    carried_items = []
    for g in range(N):
        for (it, tl, car) in dma.get(g, []):
            if car: carried_items.append((it, tl))
    def waits():
        res = {}
        fifo = []
        for (it, tl) in carried_items: fifo.append((tl, 0))
        for body in (0, 1):
            w = {}
            for g in range(N):
                if g in bars:
                    n = None
                    for (tl, off) in need.get(g, []):
                        if tl[0] not in mine: continue
                        key = (tl, body + off)
                        pos = max(i for i, x in enumerate(fifo) if x == key)
                        cnt = len(fifo) - 1 - pos
                        n = cnt if n is None else min(n, cnt)
                    w[g] = n
                for (it, tl, car) in dma.get(g, []):
                    fifo.append((tl, body + (1 if car else 0)))
            res[body] = w
        return {g: (None if res[0][g] is None else min(res[0][g], res[1][g])) for g in res[0]}
    vw = waits()
    nreads = [len(m.reads) + len(m.extra) for m in M]
    def lgk_for(i):
        return sum(nreads[(j) % N] for j in range(i+1, i-1+D))
    for i, m in enumerate(M):
        pass
    def emit_reads(i):
        m = M[i % N]
        buf = V_AB + 4*((i % N) % C.NBUF)
        for ex in m.extra:
            a(f"ds_read_b128 {vr(ex[0], 4)}, v{ex[1]} offset:{ex[2]}")
        for rd in m.reads:
            a(rd_instr(rd, buf))
    assert N % C.NBUF == (N % C.NBUF)
    if N % C.NBUF != 0:
        raise RuntimeError(f"N={N} not multiple of NBUF={C.NBUF}")
    for (it, tl) in carried_items:
        for ins in it:
            a(ins.replace(f"s{S_UNITN},", f"s{S_UNIT},") if role == "KV" else ins)
    return dict(N=N, D=D, bars=bars, need=need, dma=dma, F=F, vw=vw, lgk_for=lgk_for, emit_reads=emit_reads, rare=rare, nreads=nreads,
                carried=carried_items, mine=mine)

def emit_loop(a, role, M, marks, pfx, ctx):
    N, D = ctx["N"], ctx["D"]
    bars, dma, F, vw = ctx["bars"], ctx["dma"], ctx["F"], ctx["vw"]
    lastbar = max(bars)
    a("s_waitcnt vmcnt(0)" if False else f"s_waitcnt vmcnt({vw[lastbar] if vw[lastbar] is not None else 63})")
    a("s_barrier")
    for i in range(D):
        ctx["emit_reads"](i)
    a("s_waitcnt lgkmcnt(0)")
    a.label(f"{pfx}_loop")
    fi = 0
    stats = []
    for g in range(N):
        m = M[g]
        buf = V_AB + 4*(g % C.NBUF)
        a(f"{MFMA} {m.dst}, {vr(buf,4)}, {m.bop}, {m.cop}")
        used = 0
        n = ctx["lgk_for"](g+1)
        assert n <= 15
        a(f"s_waitcnt lgkmcnt({n})")
        if g in bars:
            if vw.get(g) is not None:
                assert vw[g] <= 63
                a(f"s_waitcnt vmcnt({vw[g]})"); used += 4
            a("s_barrier"); used += 4
        ctx["emit_reads"](g + D)
        used += 4*ctx["nreads"][(g + D) % N]
        for (it, tl, car) in dma.get(g, []):
            for ins in it:
                a(ins); used += 4
        for ins in ctx.get("hooks", {}).get(g, []):
            a(ins); used += 4
        while fi < len(F):
            f = F[fi]
            if f.due <= g or (f.ready <= g and used + f.cost <= 24):
                assert f.ready <= g or f.due <= g, (f.ins, f.ready, g)
                if f.ins.endswith(":"):
                    a.label(f.ins[:-1])
                else:
                    a(f.ins)
                used += f.cost; fi += 1
            else:
                break
        stats.append(used)
    assert fi == len(F), (fi, len(F))
    ctx["stats"] = stats

def gen_main_kernel():
    LDS_K, LDS_V, LDS_W, LDS_TOTAL = lds_layout()
    M, marks = build_mfmas()
    a = Asm()
    a("s_cmp_ge_u32 s2, 256")
    a("s_cbranch_scc1 L_exit")
    P = S_P
    a(f"s_and_b32 s{P}, s2, 7")
    a(f"s_lshr_b32 s{P+1}, s2, 3")
    a(f"s_and_b32 s{P+2}, s{P}, 1")
    a(f"s_lshr_b32 s{P+3}, s{P}, 1")
    a(f"s_lshr_b32 s{P+4}, s{P+1}, 1")
    a(f"s_and_b32 s{P+5}, s{P+1}, 1")
    a(f"s_lshl_b32 s{P+6}, s{P+3}, 1")
    a(f"s_add_u32 s{P+6}, s{P+6}, s{P+5}")
    a(f"s_mul_i32 s{P+7}, s{P+2}, 40")
    a(f"s_add_u32 s4, s0, s{P+7}")
    a("s_addc_u32 s5, s1, 0")
    X, K, V, WQ, WO, WS = 52, 54, 56, 58, 60, 62
    a(f"s_load_dwordx2 s[{X}:{X+1}], s[4:5], 0")
    a(f"s_load_dwordx2 s[{K}:{K+1}], s[4:5], 8")
    a(f"s_load_dwordx2 s[{V}:{V+1}], s[4:5], 16")
    a(f"s_load_dwordx2 s[{WQ}:{WQ+1}], s[4:5], 24")
    a(f"s_load_dwordx2 s[{WO}:{WO+1}], s[4:5], 32")
    a(f"s_load_dwordx2 s[{WS}:{WS+1}], s[0:1], 96")
    a("v_lshrrev_b32 v1, 6, v0")
    a(f"v_and_b32 v{V_LANE}, 63, v0")
    a(f"v_readfirstlane_b32 s{S_WAVE}, v1")
    L = V_LANE
    t0, t1, t2, t3, t4, t5, t6, t7 = 32, 33, 34, 35, 36, 37, 38, 39
    hi, n31, G, r, cc, ccs = 40, 41, 42, 43, 44, 45
    a(f"v_lshrrev_b32 v{hi}, 5, v{L}")
    a(f"v_and_b32 v{n31}, 31, v{L}")
    a(f"v_bfe_u32 v{G}, v{L}, 4, 1")
    a(f"v_bfe_u32 v{r}, v{L}, 2, 2")
    a(f"v_and_b32 v{cc}, 3, v{L}")
    a(f"v_and_b32 v{t0}, 1, v{cc}")
    a(f"v_lshlrev_b32 v{t0}, 1, v{t0}")
    a(f"v_lshrrev_b32 v{t1}, 1, v{cc}")
    a(f"v_or_b32 v{ccs}, v{t0}, v{t1}")
    a(f"v_and_b32 v{t0}, 3, v{n31}")
    a(f"v_lshlrev_b32 v{t0}, 2, v{t0}")
    a(f"v_bfe_u32 v{t1}, v{n31}, 2, 2")
    a(f"v_or_b32 v{t0}, v{t0}, v{t1}")
    a(f"v_xor_b32 v{t0}, v{t0}, v{hi}")
    a(f"v_lshlrev_b32 v{t0}, 4, v{t0}")
    a(f"v_lshlrev_b32 v{t1}, 8, v{n31}")
    a(f"v_add_u32 v{t0}, v{t0}, v{t1}")
    for ks in range(8):
        a(f"v_xor_b32 v{V_KA+ks}, {ks*32}, v{t0}")
        if LDS_K: a(f"v_add_u32 v{V_KA+ks}, {LDS_K}, v{V_KA+ks}")
    a(f"v_lshlrev_b32 v{t0}, 2, v{hi}")
    a(f"v_add_u32 v{t0}, v{t0}, v{r}")
    a(f"v_lshlrev_b32 v{t0}, 8, v{t0}")
    a(f"v_lshlrev_b32 v{t1}, 5, v{G}")
    a(f"v_add_u32 v{t0}, v{t0}, v{t1}")
    a(f"v_lshlrev_b32 v{t1}, 3, v{cc}")
    a(f"v_add_u32 v{t0}, v{t0}, v{t1}")
    a(f"v_add_u32 v{t0}, {LDS_V}, v{t0}")
    for T in range(4):
        a(f"v_xor_b32 v{t1}, {T}, v{r}")
        a(f"v_lshlrev_b32 v{t1}, 6, v{t1}")
        a(f"v_add_u32 v{V_VA+T}, v{t0}, v{t1}")
    a(f"v_lshlrev_b32 v{t0}, 3, v{hi}")
    a(f"v_add_u32 v{t0}, v{t0}, v{r}")
    a(f"v_lshlrev_b32 v{t0}, 8, v{t0}")
    a(f"v_lshlrev_b32 v{t1}, 5, v{G}")
    a(f"v_add_u32 v{t0}, v{t0}, v{t1}")
    a(f"v_lshlrev_b32 v{t1}, 3, v{ccs}")
    a(f"v_add_u32 v{t0}, v{t0}, v{t1}")
    a(f"v_add_u32 v{t0}, {LDS_W}, v{t0}")
    for T in range(4):
        a(f"v_xor_b32 v{t1}, {T}, v{r}")
        a(f"v_lshlrev_b32 v{t1}, 6, v{t1}")
        a(f"v_add_u32 v{V_WQA+T}, v{t0}, v{t1}")
    a(f"v_mov_b32 v{t0}, s{S_WAVE}")
    a(f"v_lshlrev_b32 v{t0}, 5, v{t0}")
    a(f"v_add_u32 v{t0}, v{t0}, v{n31}")
    a(f"v_bfe_u32 v{t1}, v{t0}, 2, 2")
    a(f"v_xor_b32 v{t1}, v{t1}, v{hi}")
    a(f"v_lshlrev_b32 v{t0}, 6, v{t0}")
    a(f"v_add_u32 v{t0}, {LDS_W + C.NW*8192}, v{t0}")
    for k in range(2):
        a(f"v_xor_b32 v{t2}, {2*k}, v{t1}")
        a(f"v_lshlrev_b32 v{t2}, 4, v{t2}")
        a(f"v_add_u32 v{V_XA+k}, v{t0}, v{t2}")
    a(f"v_lshlrev_b32 v{t0}, 2, v{hi}")
    a(f"v_add_u32 v{t0}, v{t0}, v{r}")
    a(f"v_lshlrev_b32 v{t0}, 7, v{t0}")
    a(f"v_lshlrev_b32 v{t1}, 5, v{G}")
    a(f"v_add_u32 v{t0}, v{t0}, v{t1}")
    a(f"v_lshlrev_b32 v{t1}, 3, v{ccs}")
    a(f"v_add_u32 v{t0}, v{t0}, v{t1}")
    a(f"v_add_u32 v{t0}, {LDS_W}, v{t0}")
    a(f"v_lshrrev_b32 v{t2}, 1, v{r}")
    for tcl in range(2):
        a(f"v_xor_b32 v{t1}, {tcl}, v{t2}")
        a(f"v_lshlrev_b32 v{t1}, 6, v{t1}")
        a(f"v_add_u32 v{V_WOA+tcl}, v{t0}, v{t1}")
    a(f"s_mov_b32 s{S_THR}, {C.THR:#x}")
    import struct, math
    sc = struct.unpack("<I", struct.pack("<f", math.log2(math.e) / math.sqrt(128.0)))[0]
    a(f"s_mov_b32 s{S_SCALE}, {sc:#x}")
    a(f"s_mov_b32 s{S_U}, 0")
    a("s_waitcnt lgkmcnt(0)")
    a(f"s_lshl_b32 s6, s{P+2}, 4")
    a(f"s_add_u32 s6, s6, s{P+4}")
    a(f"s_lshl_b32 s6, s6, 3")
    a(f"s_add_u32 s6, s6, s{P+6}")
    a(f"s_mul_i32 s6, s6, 147456")
    a(f"s_mul_i32 s7, s{S_WAVE}, 36864")
    a(f"s_add_u32 s6, s6, s7")
    a(f"s_add_u32 s{SRD_WS}, s{WS}, s6")
    a(f"s_addc_u32 s{SRD_WS+1}, s{WS+1}, 0")
    a(f"s_and_b32 s{SRD_WS+1}, s{SRD_WS+1}, 0xffff")
    a(f"s_mov_b32 s{SRD_WS+2}, 36864")
    a(f"s_mov_b32 s{SRD_WS+3}, 0x20000")
    a(f"s_cmp_ge_u32 s{S_WAVE}, 2")
    a("s_cbranch_scc1 L_roleW")
    a(f"s_lshl_b32 s6, s{P+4}, 3")
    a(f"s_add_u32 s6, s6, s{P+6}")
    a(f"s_lshr_b32 s7, s6, 13")
    a(f"s_lshl_b32 s6, s6, 19")
    for srd, ptr in ((SRD_A, K), (SRD_B, V)):
        a(f"s_add_u32 s{srd}, s{ptr}, s6")
        a(f"s_addc_u32 s{srd+1}, s{ptr+1}, s7")
        a(f"s_and_b32 s{srd+1}, s{srd+1}, 0xffff")
        a(f"s_mov_b32 s{srd+2}, 524288")
        a(f"s_mov_b32 s{srd+3}, 0x20000")
    a(f"s_lshl_b32 s{S_UNIT}, s{S_WAVE}, 12")
    a(f"s_add_u32 s{S_UNITN}, s{S_UNIT}, 131072")
    a(f"s_add_u32 s{S_REGION}, s{S_UNIT}, {LDS_K}")
    a(f"s_add_u32 s{S_REGV}, s{S_UNIT}, {LDS_V}")
    a(f"v_lshrrev_b32 v{t0}, 4, v{L}")
    a(f"v_and_b32 v{t1}, 15, v{L}")
    a(f"v_lshlrev_b32 v{t2}, 8, v{t0}")
    a(f"v_lshlrev_b32 v{t3}, 2, v{t0}")
    a(f"v_xor_b32 v{t3}, v{t3}, v{t1}")
    a(f"v_lshlrev_b32 v{t3}, 4, v{t3}")
    a(f"v_add_u32 v{V_DM}, v{t2}, v{t3}")
    for q in range(1, 4):
        a(f"v_xor_b32 v{V_DM+q}, {16*q}, v{V_DM}")
    a(f"s_lshl_b32 s6, s{P+6}, 10")
    a(f"s_add_u32 s{SRD_C}, s{WQ}, s6")
    a(f"s_addc_u32 s{SRD_C+1}, s{WQ+1}, 0")
    a(f"s_sub_u32 s{SRD_C+2}, {576*8192}, s6")
    a(f"s_mul_i32 s7, s{P+4}, {36*8192}")
    a(f"s_add_u32 s{S_WARM}, s7, 256")
    a(f"s_mov_b32 s{S_WARM2}, {18*8192}")
    a(f"s_mov_b32 s{S_WARMU}, 256")
    a(f"v_lshrrev_b32 v{t0}, 1, v{L}")
    a(f"v_lshlrev_b32 v{t0}, 13, v{t0}")
    a(f"v_and_b32 v{t1}, 1, v{L}")
    a(f"v_lshlrev_b32 v{t1}, 7, v{t1}")
    a(f"v_add_u32 v{V_WARM}, v{t0}, v{t1}")
    a(f"s_cmp_eq_u32 s{S_WAVE}, 0")
    a("s_cbranch_scc1 L_warm_done")
    a(f"s_mul_i32 s6, s{P+6}, {512*1152}")
    a(f"s_add_u32 s{SRD_C}, s{WO}, s6")
    a(f"s_addc_u32 s{SRD_C+1}, s{WO+1}, 0")
    a(f"s_mov_b32 s{SRD_C+2}, {512*1152}")
    a(f"s_mul_i32 s{S_WARM}, s{P+4}, {72*128}")
    a(f"s_mov_b32 s{S_WARM2}, {36*128}")
    a(f"s_mov_b32 s{S_WARMU}, {128*1152}")
    a(f"v_lshlrev_b32 v{V_WARM}, 7, v{L}")
    a.label("L_warm_done")
    a(f"s_and_b32 s{SRD_C+1}, s{SRD_C+1}, 0xffff")
    a(f"s_mov_b32 s{SRD_C+3}, 0x20000")
    a(f"v_mov_b32 v{t0}, 0x7fffff00")
    a(f"v_cmp_gt_u32 vcc, 36, v{L}")
    a("s_nop 1")
    a(f"v_cndmask_b32 v{V_WARM}, v{t0}, v{V_WARM}, vcc")
    def zero_acc():
        for k in range(256): a(f"v_accvgpr_write_b32 a{k}, 0")
        for k in range(32): a(f"v_mov_b32 v{V_OUT16+k}, 0")
    infos = {}
    def role_code(role, pfx):
        mark = len(a.lines)
        ctx = gen_body(a, role, M, marks, pfx)
        zero_acc()
        N = ctx["N"]
        hooks = {}
        if role == "KV":
            hooks[N-1] = [f"s_mov_b32 s{S_UNIT}, s{S_UNITN}", f"s_add_u32 s{S_UNITN}, s{S_UNITN}, 131072",
                          f"s_add_u32 s{S_WARM}, s{S_WARM}, s{S_WARMU}"]
        else:
            hooks[N-1] = [f"s_add_u32 s{S_OBASE}, s{S_OBASE}, {128*1152}"]
            hooks[marks["OUT"]] = [f"s_add_u32 s{S_QBASE}, s{S_QBASE}, s{S_QUSTR}",
                                   f"s_cmp_eq_u32 s{S_U}, {C.nunits-1}",
                                   f"s_cselect_b32 s{S_QBASE}, 0x7f000000, s{S_QBASE}"]
        ctx["hooks"] = hooks
        emit_loop(a, role, M, marks, pfx, ctx)
        a(f"s_add_u32 s{S_U}, s{S_U}, 1")
        a(f"s_cmp_lt_u32 s{S_U}, {C.nunits}")
        a(f"s_cbranch_scc1 {pfx}_loop")
        a("s_branch L_final")
        for t in range(16):
            rare_code(a, t, ctx["rare"][t])
        infos[role] = ctx
    role_code("KV", "kv")
    a.label("L_roleW")
    a(f"s_lshl_b32 s6, s{P+6}, 10")
    a(f"s_add_u32 s{SRD_A}, s{WQ}, s6")
    a(f"s_addc_u32 s{SRD_A+1}, s{WQ+1}, 0")
    a(f"s_sub_u32 s{SRD_A+2}, {576*8192}, s6")
    a(f"s_mov_b32 s{S_QPIECE}, {4*8192}")
    a(f"s_mov_b32 s{S_QSTAGE}, {32*8192}")
    a(f"s_mov_b32 s{S_QUSTR}, 256")
    a(f"v_lshrrev_b32 v{t0}, 4, v{L}")
    a(f"v_and_b32 v{t1}, 15, v{L}")
    a(f"v_lshlrev_b32 v{t3}, 2, v{t0}")
    a(f"v_xor_b32 v{t3}, v{t3}, v{t1}")
    a(f"v_lshlrev_b32 v{t3}, 4, v{t3}")
    a(f"v_lshlrev_b32 v{t2}, 13, v{t0}")
    a(f"v_add_u32 v{V_DM}, v{t2}, v{t3}")
    a(f"s_cmp_eq_u32 s{S_WAVE}, 2")
    a("s_cbranch_scc1 L_q_done")
    a(f"s_mul_i32 s6, s{P+4}, 129024")
    a(f"s_add_u32 s{SRD_A}, s{X}, s6")
    a(f"s_addc_u32 s{SRD_A+1}, s{X+1}, 0")
    a(f"s_sub_u32 s{SRD_A+2}, {16*129024}, s6")
    a(f"s_mov_b32 s{S_QPIECE}, {16*1152}")
    a(f"s_mov_b32 s{S_QSTAGE}, 64")
    a(f"s_mov_b32 s{S_QUSTR}, 0")
    a(f"v_lshrrev_b32 v{t0}, 2, v{L}")
    a(f"v_and_b32 v{t1}, 3, v{L}")
    a(f"v_bfe_u32 v{t3}, v{L}, 4, 2")
    a(f"v_xor_b32 v{t3}, v{t3}, v{t1}")
    a(f"v_lshlrev_b32 v{t3}, 4, v{t3}")
    a(f"s_movk_i32 s6, 1152")
    a(f"v_mul_lo_u32 v{t2}, v{t0}, s6")
    a(f"v_add_u32 v{V_DM}, v{t2}, v{t3}")
    a.label("L_q_done")
    a(f"s_and_b32 s{SRD_A+1}, s{SRD_A+1}, 0xffff")
    a(f"s_mov_b32 s{SRD_A+3}, 0x20000")
    a(f"s_mov_b32 s{S_QBASE}, 0")
    a(f"s_mul_i32 s6, s{P+6}, {512*1152}")
    a(f"s_add_u32 s{SRD_B}, s{WO}, s6")
    a(f"s_addc_u32 s{SRD_B+1}, s{WO+1}, 0")
    a(f"s_and_b32 s{SRD_B+1}, s{SRD_B+1}, 0xffff")
    a(f"s_mov_b32 s{SRD_B+2}, {512*1152}")
    a(f"s_mov_b32 s{SRD_B+3}, 0x20000")
    a(f"s_sub_u32 s6, s{S_WAVE}, 2")
    a(f"s_mul_i32 s{S_OBASE}, s6, {64*1152}")
    a(f"s_mul_i32 s{S_REGION}, s6, {C.NW*8192}")
    a(f"s_add_u32 s{S_REGION}, s{S_REGION}, {LDS_W}")
    a(f"v_lshrrev_b32 v{t0}, 3, v{L}")
    a(f"v_and_b32 v{t1}, 7, v{L}")
    a(f"v_bfe_u32 v{t3}, v{L}, 4, 1")
    a(f"v_lshlrev_b32 v{t3}, 2, v{t3}")
    a(f"v_xor_b32 v{t3}, v{t3}, v{t1}")
    a(f"v_lshlrev_b32 v{t3}, 4, v{t3}")
    a(f"s_movk_i32 s6, 1152")
    a(f"v_mul_lo_u32 v{t2}, v{t0}, s6")
    a(f"v_add_u32 v{V_DM+1}, v{t2}, v{t3}")
    role_code("W", "w")
    a.label("L_final")
    a("s_nop 15")
    a(f"v_mbcnt_lo_u32_b32 v{V_LANE}, -1, 0")
    a(f"v_mbcnt_hi_u32_b32 v{V_LANE}, -1, v{V_LANE}")
    a(f"v_lshlrev_b32 v1, 4, v{V_LANE}")
    a(f"v_and_b32 v2, 31, v{V_LANE}")
    a(f"v_mov_b32 v3, 0x7fffff00")
    a(f"v_cmp_gt_u32 vcc, 16, v2")
    a("s_nop 1")
    a(f"v_cndmask_b32 v3, v3, v1, vcc")
    a(f"s_cmp_eq_u32 s{S_WAVE}, 3")
    a("s_cbranch_scc0 L_st0")
    a("v_mov_b32 v1, v3")
    a.label("L_st0")
    a(f"s_mov_b32 s{S_T}, 0")
    tb = 48
    cnt = 0
    for tc in range(18):
        for h in range(2):
            base = tb + (cnt % 4) * 12
            src = []
            for k in range(8):
                rr_ = 8*h + k
                if tc < 16:
                    a(f"v_accvgpr_read_b32 v{base+k}, a{16*tc+rr_}")
                    src.append(base+k)
                else:
                    src.append(V_OUT16 + 16*(tc-16) + rr_)
            if tc < 16: a("s_nop 0")
            for k in range(4):
                a(f"v_cvt_pk_bf16_f32 v{base+8+k}, v{src[2*k]}, v{src[2*k+1]}")
            off = (cnt % 4) * 1024
            a(f"buffer_store_dwordx4 v[{base+8}:{base+11}], v1, s[{SRD_WS}:{SRD_WS+3}], s{S_T} offen offset:{off}{C.st_flags}")
            if cnt % 4 == 3:
                a(f"s_add_u32 s{S_T}, s{S_T}, 4096")
            cnt += 1
    a.label("L_exit")
    a("s_endpgm")
    return a.text(), infos, LDS_TOTAL

def gen_reduce_kernel():
    a = Asm()
    a("s_cmp_ge_u32 s2, 1152")
    a("s_cbranch_scc1 R_exit")
    a("s_load_dwordx2 s[4:5], s[0:1], 96")
    a("s_load_dwordx2 s[6:7], s[0:1], 80")
    a("v_lshrrev_b32 v1, 6, v0")
    a("v_and_b32 v2, 63, v0")
    a("v_readfirstlane_b32 s8, v1")
    a("s_lshl_b32 s9, s2, 2")
    a("s_add_u32 s9, s9, s8")
    a(f"s_mov_b32 s10, {(2**32 + 35)//36}")
    a("s_mul_hi_u32 s11, s9, s10")
    a("s_mul_i32 s12, s11, 36")
    a("s_sub_u32 s12, s9, s12")
    a("s_and_b32 s13, s11, 3")
    a("s_lshr_b32 s14, s11, 2")
    a("s_mul_i32 s15, s14, 1179648")
    a("s_mul_i32 s16, s13, 36864")
    a("s_add_u32 s15, s15, s16")
    a("s_lshl_b32 s16, s12, 10")
    a("s_add_u32 s15, s15, s16")
    a("s_waitcnt lgkmcnt(0)")
    a("s_mov_b32 s20, s4")
    a("s_and_b32 s21, s5, 0xffff")
    a(f"s_mov_b32 s22, {256*147456}")
    a("s_mov_b32 s23, 0x20000")
    a("s_mov_b32 s24, s6")
    a("s_and_b32 s25, s7, 0xffff")
    a(f"s_mov_b32 s26, {16*112*1152*2}")
    a("s_mov_b32 s27, 0x20000")
    a("v_and_b32 v3, 31, v2")
    a("v_lshrrev_b32 v4, 5, v2")
    a("v_lshlrev_b32 v5, 4, v2")
    a("s_lshl_b32 s17, s13, 5")
    a("v_add_u32 v6, s17, v3")
    a("v_mov_b32 v7, 0x7fffff00")
    a("v_cmp_gt_u32 vcc, 112, v6")
    a("s_nop 1")
    a("v_cndmask_b32 v5, v7, v5, vcc")
    for p in range(8):
        a(f"buffer_load_dwordx4 v[{16+4*p}:{19+4*p}], v5, s[20:23], s15 offen")
        if p < 7: a("s_add_u32 s15, s15, 147456")
    a("s_and_b32 s18, s14, 15")
    a("s_lshr_b32 s19, s14, 4")
    a("s_mul_i32 s18, s18, 112")
    a("v_add_u32 v6, s18, v6")
    a("s_movk_i32 s28, 2304")
    a("v_mul_lo_u32 v6, v6, s28")
    a("s_mul_i32 s19, s19, 1152")
    a("s_lshl_b32 s29, s12, 5")
    a("s_add_u32 s19, s19, s29")
    a("v_lshlrev_b32 v4, 4, v4")
    a("v_add_u32 v6, v6, v4")
    a("v_add_u32 v6, s19, v6")
    a("v_cndmask_b32 v6, v7, v6, vcc")
    for p in range(8):
        a(f"s_waitcnt vmcnt({7-p})")
        for k in range(4):
            src = 16 + 4*p + k
            if p == 0:
                a(f"v_lshlrev_b32 v{48+2*k}, 16, v{src}")
                a(f"v_and_b32 v{49+2*k}, 0xffff0000, v{src}")
            else:
                a(f"v_lshlrev_b32 v8, 16, v{src}")
                a(f"v_and_b32 v9, 0xffff0000, v{src}")
                a(f"v_add_f32 v{48+2*k}, v{48+2*k}, v8")
                a(f"v_add_f32 v{49+2*k}, v{49+2*k}, v9")
    for k in range(4):
        a(f"v_cvt_pk_bf16_f32 v{56+k}, v{48+2*k}, v{49+2*k}")
    a("buffer_store_dwordx4 v[56:59], v6, s[24:27], 0 offen")
    a.label("R_exit")
    a("s_endpgm")
    return a.text()

def generate(path):
    body, infos, lds = gen_main_kernel()
    red = gen_reduce_kernel()
    txt = make_file([("attn_main_kernel", 256, 256, lds), ("attn_reduce_kernel", 1152, 256, 0)],
                    [("attn_main_kernel", body, 512, 64, 256), ("attn_reduce_kernel", red, 64, 32, 64)])
    open(path, "w").write(txt)
    return infos

if __name__ == "__main__":
    out = sys.argv[1] if len(sys.argv) > 1 else "main.s"
    for kv in sys.argv[2:]:
        k, v = kv.split("=")
        setattr(C, k, eval(v))
    infos = generate(out)
    for role, ctx in infos.items():
        st = ctx["stats"]
        over = [(g, u) for g, u in enumerate(st) if u > 24]
        print(role, "gaps over budget:", len(over), "sum excess", sum(u-24 for g, u in over), "max vm", max(v for v in ctx["vw"].values() if v is not None))
        print("   ", over[:60])
```

```python
import sys, struct, math
from asmlib import *

class Cfg:
    nt_kv = True
    THR = 0x47800000
    stamp = False
    st_flags = ""
    only = None
    samekv = False
    AH = 2
    warm = True
    mapv = 0
    late_kv = True
C = Cfg()

MF = "v_mfma_f32_16x16x32_bf16"
def vr(b, n=1): return f"v{b}" if n == 1 else f"v[{b}:{b+n-1}]"
def ar(b, n=1): return f"a{b}" if n == 1 else f"a[{b}:{b+n-1}]"
def f2u(x): return struct.unpack('<I', struct.pack('<f', x))[0]

WR = 40960

S_WAVE = 3
SRD_X = 8; SRD_WQ = 12; SRD_K = 16; SRD_V = 20; SRD_WO = 24; SRD_WS = 28
S_WR = 32; S_T = 33; S_T2 = 34; S_CNT = 35
S_RD = 36
S_GOFF = 37
S_THR = 38; S_SCALE = 39; S_NSC = 40
S_FIRST = 42
S_WREND = 44
S_XOFF = 45
S_XLDS = 46
S_P = 48

V_LANE = 0
V_DK = 1
V_DV = 5
V_KL = 7
V_VL = 8
V_A = 9
V_T = 17
V_TS = 23
V_L = 24
V_STAMP = 31

class Tracker:
    def __init__(self, a):
        self.a = a; self.lds = []; self.vm = []
    def __call__(self, s): self.a(s)
    def ds(self, ins, tag):
        self.a(ins); self.lds.append(tag)
    def vmem(self, ins, tag):
        self.a(ins); self.vm.append(tag)
    def _cnt(self, lst, tags):
        pos = [i for i, x in enumerate(lst) if x in tags]
        if not pos: return None
        return len(lst) - 1 - max(pos)
    def wait_lds(self, *tags):
        n = self._cnt(self.lds, tags)
        if n is None: return
        self.a(f"s_waitcnt lgkmcnt({min(n, 15)})")
        keep = min(n, 15)
        self.lds = self.lds[len(self.lds)-keep:] if keep else []
    def wait_vm(self, *tags):
        n = self._cnt(self.vm, tags)
        if n is None: return
        self.a(f"s_waitcnt vmcnt({min(n, 63)})")
        keep = min(n, 63)
        self.vm = self.vm[len(self.vm)-keep:] if keep else []

class Sched:
    def __init__(self, tr, budget=8):
        self.tr = tr; self.M = []; self.act = {}; self.F = []; self.budget = budget
    def mfma(self, s): self.M.append(s); return len(self.M) - 1
    def at(self, g, fn, cost=4):
        self.act.setdefault(g, []).append((fn, cost))
    def fill(self, ins, ready=-1, due=10**9, cost=4): self.F.append((ins, cost, ready, due))
    def emit(self):
        tr = self.tr; fi = 0
        def do_fill(g, used):
            nonlocal fi
            while fi < len(self.F):
                ins, cost, ready, due = self.F[fi]
                if due <= g or (ready <= g and used + cost <= self.budget):
                    if callable(ins): ins()
                    elif ins.endswith(":"): tr.a.label(ins[:-1])
                    else: tr(ins)
                    used += cost; fi += 1
                else: break
        for fn, c in self.act.get(-1, []): fn()
        do_fill(-1, 10**6)
        for g, m in enumerate(self.M):
            tr(m)
            used = -4
            for fn, c in self.act.get(g, []):
                fn(); used += c
            do_fill(g, max(used, 0))
        do_fill(10**9 - 1, -10**9)
        do_fill(10**9, -10**9)
        assert fi == len(self.F)

def xlane(op, dst, tmp):
    return [f"v_mov_b32 v{tmp}, v{dst}", "s_nop 1", f"v_permlane32_swap_b32 v{dst}, v{tmp}", "s_nop 1", f"{op} v{dst}, v{dst}, v{tmp}",
            f"v_mov_b32 v{tmp}, v{dst}", "s_nop 1", f"v_permlane16_swap_b32 v{dst}, v{tmp}", "s_nop 1", f"{op} v{dst}, v{dst}, v{tmp}"]

def gen_main():
    a = Asm()
    tr = Tracker(a)
    P = S_P
    nt = " nt" if C.nt_kv else ""
    stamp_i = [0]
    def st():
        if C.stamp:
            a("s_memtime s[64:65]")
            a("s_memrealtime s[66:67]")
            a("s_waitcnt lgkmcnt(0)")
            a(f"v_writelane_b32 v{V_STAMP}, s64, {stamp_i[0]}")
            a(f"v_writelane_b32 v{V_STAMP}, s66, {32 + stamp_i[0]}")
            tr.lds = []
        stamp_i[0] += 1
    a("s_cmp_ge_u32 s2, 256")
    a("s_cbranch_scc1 L_exit")
    if C.stamp:
        a("s_memrealtime s[70:71]")
    a(f"s_and_b32 s{P}, s2, 7")
    a(f"s_lshr_b32 s{P+1}, s2, 3")
    if C.mapv == 0:
        a(f"s_and_b32 s{P+2}, s{P}, 1")
        a(f"s_and_b32 s{P+5}, s{P+1}, 1")
    elif C.mapv == 1:
        a(f"s_and_b32 s{P+2}, s{P}, 1")
        a(f"s_xor_b32 s{P+2}, s{P+2}, 1")
        a(f"s_and_b32 s{P+5}, s{P+1}, 1")
    a(f"s_lshr_b32 s{P+3}, s{P}, 1")
    a(f"s_lshr_b32 s{P+4}, s{P+1}, 1")
    a(f"s_lshl_b32 s{P+6}, s{P+3}, 1")
    a(f"s_add_u32 s{P+6}, s{P+6}, s{P+5}")
    a(f"s_mul_i32 s{P+7}, s{P+2}, 40")
    a(f"s_add_u32 s4, s0, s{P+7}")
    a("s_addc_u32 s5, s1, 0")
    X, K, V, WQ, WO, WS = 72, 74, 76, 78, 80, 82
    for r_, o in ((X, 0), (K, 8), (V, 16), (WQ, 24), (WO, 32)):
        a(f"s_load_dwordx2 s[{r_}:{r_+1}], s[4:5], {o}")
    a(f"s_load_dwordx2 s[{WS}:{WS+1}], s[0:1], 96")
    a("v_lshrrev_b32 v1, 6, v0")
    a(f"v_and_b32 v{V_LANE}, 63, v0")
    a(f"v_readfirstlane_b32 s{S_WAVE}, v1")
    L = V_LANE
    t0, t1, t2, t3, n, g, r, cc = 32, 33, 34, 35, 36, 37, 38, 39
    a(f"v_and_b32 v{n}, 15, v{L}")
    a(f"v_lshrrev_b32 v{g}, 4, v{L}")
    a(f"v_bfe_u32 v{r}, v{L}, 2, 2")
    a(f"v_and_b32 v{cc}, 3, v{L}")
    if C.stamp: a(f"v_mov_b32 v{V_STAMP}, 0")
    a(f"s_mul_i32 s{S_WR}, s{S_WAVE}, {WR}")
    a(f"s_add_u32 s{S_WREND}, s{S_WR}, {WR}")
    a(f"s_mov_b32 s{S_THR}, {C.THR:#x}")
    sc = math.log2(math.e) / math.sqrt(128.0)
    a(f"s_mov_b32 s{S_SCALE}, {f2u(sc):#x}")
    a(f"s_mov_b32 s{S_NSC}, {f2u(-sc):#x}")
    a(f"s_mul_i32 s{S_XOFF}, s{S_WAVE}, {16*1152}")
    a(f"s_lshl_b32 s{S_XLDS}, s{S_WAVE}, 10")
    V_DQ = 9
    V_DX = 11
    V_XA = 12
    V_QA = 13
    a(f"v_lshrrev_b32 v{t0}, 3, v{L}")
    a(f"v_and_b32 v{t1}, 7, v{L}")
    a(f"v_bfe_u32 v{t3}, v{L}, 4, 1")
    a(f"v_lshlrev_b32 v{t3}, 1, v{t3}")
    a(f"v_xor_b32 v{t3}, v{t3}, v{t1}")
    a(f"v_lshlrev_b32 v{t3}, 4, v{t3}")
    a(f"v_lshlrev_b32 v{t2}, 13, v{t0}")
    a(f"v_add_u32 v{V_DQ}, v{t2}, v{t3}")
    a(f"v_xor_b32 v{V_DQ+1}, 64, v{V_DQ}")
    a(f"v_lshrrev_b32 v{t0}, 2, v{L}")
    a(f"v_sub_u32 v{t1}, 0, v{g}")
    a(f"v_and_b32 v{t1}, 3, v{t1}")
    a(f"v_xor_b32 v{t1}, v{t1}, v{cc}")
    a(f"v_lshlrev_b32 v{t1}, 4, v{t1}")
    a(f"s_movk_i32 s6, 1152")
    a(f"v_mul_lo_u32 v{t2}, v{t0}, s6")
    a(f"v_add_u32 v{V_DX}, v{t2}, v{t1}")
    a(f"v_and_b32 v{t1}, 15, v{L}")
    a(f"v_lshlrev_b32 v{t2}, 8, v{g}")
    for q in range(4):
        a(f"v_add_u32 v{t3}, {4*q}, v{g}")
        a(f"v_xor_b32 v{t3}, v{t3}, v{t1}")
        a(f"v_lshlrev_b32 v{t3}, 4, v{t3}")
        a(f"v_add_u32 v{V_DK+q}, v{t2}, v{t3}")
    a(f"v_lshlrev_b32 v{t3}, 1, v{g}")
    a(f"v_xor_b32 v{t3}, v{t3}, v{t1}")
    a(f"v_lshlrev_b32 v{t3}, 4, v{t3}")
    a(f"v_add_u32 v{V_DV}, v{t2}, v{t3}")
    a(f"v_xor_b32 v{V_DV+1}, 128, v{V_DV}")
    a("s_waitcnt lgkmcnt(0)")
    def srd(dst, ptr, off_lo, off_hi, size):
        a(f"s_add_u32 s{dst}, s{ptr}, {off_lo}")
        a(f"s_addc_u32 s{dst+1}, s{ptr+1}, {off_hi}")
        a(f"s_and_b32 s{dst+1}, s{dst+1}, 0xffff")
        a(f"s_mov_b32 s{dst+2}, {size}")
        a(f"s_mov_b32 s{dst+3}, 0x20000")
    a(f"s_lshl_b32 s6, s{P+6}, 2")
    a(f"s_add_u32 s{P+8}, s6, s{S_WAVE}")
    a(f"s_lshl_b32 s6, s{P+8}, 8")
    a(f"s_sub_u32 s7, {576*8192}, s6")
    srd(SRD_WQ, WQ, "s6", 0, "s7")
    a(f"s_mul_i32 s6, s{P+4}, 129024")
    srd(SRD_X, X, "s6", 0, 129024)
    XSL = [32768, WR + 32768]
    def dma_wq(ks, h):
        items = []
        for p in range(4):
            items.append(([f"s_add_u32 m0, s{S_WR}, {16384 + (ks%2)*8192 + h*4096 + p*1024}",
                           f"s_mov_b32 s{S_T}, {(32*ks + 8*p)*8192 + h*128}"],
                          f"buffer_load_dwordx4 v{V_DQ + (p & 1)}, s[{SRD_WQ}:{SRD_WQ+3}], s{S_T} offen lds", ("wq", ks, h)))
        return items
    def dma_x(ks):
        items = []
        for k in range(2):
            items.append(([f"s_add_u32 m0, s{S_XLDS}, {XSL[ks%2] + k*4096}",
                           f"s_add_u32 s{S_T}, s{S_XOFF}, {k*64*1152 + ks*64}"],
                          f"buffer_load_dwordx4 v{V_DX}, s[{SRD_X}:{SRD_X+3}], s{S_T} offen lds", ("x", ks)))
        return items
    def emit_item(it):
        for s_ in it[0]: tr(s_)
        tr.vmem(it[1], it[2])
    for it in dma_wq(0, 0) + dma_x(0) + dma_wq(0, 1): emit_item(it)
    if C.warm:
        WSRD = 84
        a(f"s_lshl_b32 s6, s{P+3}, 11")
        a(f"s_sub_u32 s7, {576*8192}, s6")
        srd(WSRD, WQ, "s6", 0, "s7")
        a(f"s_lshl_b32 s6, s{P+1}, 2")
        a(f"s_add_u32 s6, s6, s{S_WAVE}")
        a(f"s_mul_i32 s{P+9}, s6, 72")
        for k in range(2):
            a(f"v_add_u32 v{t0}, s{P+9}, v{L}")
            if k: a(f"v_add_u32 v{t0}, 36, v{t0}")
            a(f"v_lshrrev_b32 v{t1}, 4, v{t0}")
            a(f"v_lshlrev_b32 v{t1}, 13, v{t1}")
            a(f"v_and_b32 v{t0}, 15, v{t0}")
            a(f"v_lshlrev_b32 v{t0}, 7, v{t0}")
            a(f"v_add_u32 v{t0}, v{t0}, v{t1}")
            a(f"v_mov_b32 v{t1}, 0x7fffff00")
            a(f"v_cmp_gt_u32 vcc, 36, v{L}")
            a("s_nop 1")
            a(f"v_cndmask_b32 v{t0}, v{t1}, v{t0}, vcc")
            tr.vmem(f"buffer_load_dword v{V_TS}, v{t0}, s[{WSRD}:{WSRD+3}], 0 offen", "warm")
        a(f"s_lshl_b32 s6, s{P+5}, 2")
        a(f"s_add_u32 s6, s6, s{S_WAVE}")
        a(f"s_mul_i32 s6, s6, {126*128}")
        a(f"v_lshlrev_b32 v{t0}, 7, v{L}")
        tr.vmem(f"buffer_load_dword v{V_TS}, v{t0}, s[{SRD_X}:{SRD_X+3}], s6 offen", "warm")
        a(f"s_add_u32 s6, s6, {63*128}")
        tr.vmem(f"buffer_load_dword v{V_TS}, v{t0}, s[{SRD_X}:{SRD_X+3}], s6 offen", "warm")
    for it in dma_wq(1, 0) + dma_x(1) + dma_wq(1, 1): emit_item(it)
    a(f"s_lshl_b32 s6, s{P+4}, 5")
    a(f"s_add_u32 s6, s6, s{P+8}")
    if C.samekv: a("s_and_b32 s6, s6, 31")
    a(f"s_lshr_b32 s7, s6, 15")
    a(f"s_lshl_b32 s6, s6, 17")
    srd(SRD_K, K, "s6", "s7", 131072)
    srd(SRD_V, V, "s6", "s7", 131072)
    def dma_tile(kind, lds_expr, goff_expr, tag):
        items = []
        for h in range(2):
            for q in range(4):
                pre = []
                if q == 0:
                    pre.append(f"s_add_u32 m0, s{lds_expr[0]}, {lds_expr[1] + h*4096}")
                    if goff_expr[0] is None: pre.append(f"s_mov_b32 s{S_T}, {goff_expr[1] + h*4096}")
                    else: pre.append(f"s_add_u32 s{S_T}, s{goff_expr[0]}, {goff_expr[1] + h*4096}")
                if kind == "K":
                    ins = f"buffer_load_dwordx4 v{V_DK+q}, s[{SRD_K}:{SRD_K+3}], s{S_T} offen offset:{q*1024}{nt} lds"
                else:
                    ins = f"buffer_load_dwordx4 v{V_DV + (q & 1)}, s[{SRD_V}:{SRD_V+3}], s{S_T} offen offset:{q*1024}{nt} lds"
                items.append((pre, ins, tag))
        return items
    if C.late_kv:
        a(f"v_mov_b32 v{t0}, 0")
        tr.vmem(f"buffer_load_dword v{V_TS}, v{t0}, s[{SRD_K}:{SRD_K+3}], 0 offen", "warm")
        tr.vmem(f"buffer_load_dword v{V_TS}, v{t0}, s[{SRD_V}:{SRD_V+3}], 0 offen", "warm")
    kv01 = dma_tile("K", (S_WR, 0), (None, 0), ("kv", 0)) + dma_tile("V", (S_WR, 8192), (None, 0), ("kv", 1))
    if not C.late_kv:
        for it in kv01: emit_item(it)
    a(f"s_mul_i32 s6, s{P+6}, {512*1152}")
    a(f"s_mul_i32 s7, s{S_WAVE}, 288")
    a(f"s_add_u32 s6, s6, s7")
    a(f"s_sub_u32 s7, {512*1152}, s7")
    srd(SRD_WO, WO, "s6", 0, "s7")
    a(f"s_lshl_b32 s6, s{P+2}, 4")
    a(f"s_add_u32 s6, s6, s{P+4}")
    a(f"s_lshl_b32 s6, s6, 3")
    a(f"s_add_u32 s6, s6, s{P+6}")
    a(f"s_lshl_b32 s6, s6, 2")
    a(f"s_add_u32 s6, s6, s{S_WAVE}")
    a(f"s_mul_i32 s6, s6, 32768")
    srd(SRD_WS, WS, "s6", 0, 32768)
    a(f"v_lshrrev_b32 v{t0}, 1, v{g}")
    a(f"v_xor_b32 v{t0}, v{t0}, v{n}")
    a(f"v_lshlrev_b32 v{t0}, 4, v{t0}")
    a(f"v_lshlrev_b32 v{t1}, 8, v{n}")
    a(f"v_add_u32 v{t0}, v{t0}, v{t1}")
    a(f"v_and_b32 v{t1}, 1, v{g}")
    a(f"v_lshlrev_b32 v{t1}, 3, v{t1}")
    a(f"v_add_u32 v{V_KL}, v{t0}, v{t1}")
    a(f"v_lshlrev_b32 v{t0}, 2, v{g}")
    a(f"v_add_u32 v{t0}, v{t0}, v{r}")
    a(f"v_and_b32 v{t1}, 7, v{t0}")
    a(f"v_lshlrev_b32 v{t1}, 1, v{t1}")
    a(f"v_lshrrev_b32 v{t2}, 1, v{cc}")
    a(f"v_xor_b32 v{t1}, v{t1}, v{t2}")
    a(f"v_lshlrev_b32 v{t1}, 4, v{t1}")
    a(f"v_lshlrev_b32 v{t0}, 8, v{t0}")
    a(f"v_add_u32 v{t0}, v{t0}, v{t1}")
    a(f"v_and_b32 v{t1}, 1, v{cc}")
    a(f"v_lshlrev_b32 v{t1}, 3, v{t1}")
    a(f"v_add_u32 v{V_VL}, v{t0}, v{t1}")
    a(f"v_lshrrev_b32 v{t0}, 1, v{r}")
    a(f"v_and_b32 v{t1}, 1, v{g}")
    a(f"v_lshlrev_b32 v{t1}, 1, v{t1}")
    a(f"v_or_b32 v{t0}, v{t0}, v{t1}")
    a(f"v_lshlrev_b32 v{t0}, 1, v{t0}")
    a(f"v_lshrrev_b32 v{t1}, 1, v{cc}")
    a(f"v_xor_b32 v{t0}, v{t0}, v{t1}")
    a(f"v_lshlrev_b32 v{t0}, 4, v{t0}")
    a(f"v_lshlrev_b32 v{t1}, 3, v{g}")
    a(f"v_add_u32 v{t1}, v{t1}, v{r}")
    a(f"v_lshlrev_b32 v{t1}, 7, v{t1}")
    a(f"v_add_u32 v{t0}, v{t0}, v{t1}")
    a(f"v_and_b32 v{t1}, 1, v{cc}")
    a(f"v_lshlrev_b32 v{t1}, 3, v{t1}")
    a(f"v_add_u32 v{t0}, v{t0}, v{t1}")
    a(f"s_add_u32 s6, s{S_WR}, 16384")
    a(f"v_add_u32 v{t0}, s6, v{t0}")
    for Tl in range(4):
        a(f"v_xor_b32 v{V_QA+Tl}, {Tl*32}, v{t0}")
    a(f"v_lshrrev_b32 v{t0}, 2, v{n}")
    a(f"v_sub_u32 v{t0}, 0, v{t0}")
    a(f"v_and_b32 v{t0}, 3, v{t0}")
    a(f"v_xor_b32 v{t0}, v{t0}, v{g}")
    a(f"v_lshlrev_b32 v{t0}, 4, v{t0}")
    a(f"v_lshlrev_b32 v{t1}, 6, v{n}")
    a(f"v_add_u32 v{t0}, v{t0}, v{t1}")
    a(f"v_add_u32 v{V_XA}, 32768, v{t0}")
    st()
    QACC = 32
    def qacc(T, jq): return QACC + (T*7 + jq)*4
    XF = [0, 28]; WB = 56; NB = 4; AH = C.AH
    def xread(ks, jq):
        tr.ds(f"ds_read_b128 {ar(XF[ks%2] + 4*jq, 4)}, v{V_XA} offset:{(XSL[ks%2]-32768) + jq*1024}", ("X", ks))
    def wread(tile, k):
        ks, T = divmod(tile, 8)
        off = (ks % 2)*8192 + (T // 4)*4096 + k*512
        tr.ds(f"ds_read_b64_tr_b16 {ar(WB + 4*(tile % NB) + 2*k, 2)}, v{V_QA + T % 4} offset:{off}", ("A", tile))
    tr.wait_vm(("x", 0))
    a("s_barrier")
    for jq in range(7): xread(0, jq)
    for tile in range(AH):
        wread(tile, 0); wread(tile, 1)
    S = Sched(tr)
    for ks in range(18):
        for T in range(8):
            tile = ks*8 + T
            for jq in range(7):
                cop = "0" if ks == 0 else vr(qacc(T, jq), 4)
                S.mfma(f"{MF} {vr(qacc(T, jq), 4)}, {ar(WB + 4*(tile % NB), 4)}, {ar(XF[ks%2] + 4*jq, 4)}, {cop}")
    NT = 144
    for tile in range(NT):
        ks, T = divmod(tile, 8)
        g0 = tile*7
        need = [("A", tile)] + ([("X", ks)] if T == 0 else [])
        S.at(g0 - 1, (lambda need=need: tr.wait_lds(*need)))
        nx = tile + AH
        if nx < NT:
            nks, nT = divmod(nx, 8)
            if nT % 4 == 0:
                S.at(g0, (lambda nks=nks, nT=nT: tr.wait_vm(("wq", nks, nT // 4))))
            S.at(g0 + 1, (lambda nx=nx: wread(nx, 0)))
            S.at(g0 + 2, (lambda nx=nx: wread(nx, 1)))
        if T % 4 == 3 and ks + 2 < 18:
            for k, it in enumerate(dma_wq(ks + 2, T // 4)):
                S.at(g0 + 3 + k*2 if k < 2 else g0 + 7 + 3 + (k-2)*2, (lambda it=it: emit_item(it)), cost=12)
        if T == 4 and ks + 1 < 18:
            def midbar(ks=ks):
                tr.wait_vm(("x", ks + 1))
                tr("s_barrier")
            S.at(g0 + 3, midbar, cost=8)
            if ks + 2 < 18:
                for k, it in enumerate(dma_x(ks + 2)):
                    S.at(g0 + 5 + k, (lambda it=it: emit_item(it)), cost=12)
            for jq in range(7):
                S.at(g0 + 7 + 3 + (jq % 4) + (jq // 4)*7, (lambda ks=ks, jq=jq: xread(ks + 1, jq)))
    if C.late_kv:
        for k, it in enumerate(kv01):
            S.at(16*56 + 14 + 2*k, (lambda it=it: emit_item(it)), cost=8)
    if C.stamp:
        def qst(i):
            a("s_memtime s[64:65]"); a("s_waitcnt lgkmcnt(0)"); a(f"v_writelane_b32 v{V_STAMP}, s64, {i}"); tr.lds = []
        for i, ks in enumerate((0, 1, 2, 3, 6, 12)):
            S.at(ks*56, (lambda i=i: qst(8 + i)))
    for k in range(72, 224):
        S.fill(f"v_accvgpr_write_b32 a{k}, 0", ready=20)
    for jq in range(7):
        S.fill(f"v_mov_b32 v{V_L+jq}, 0", ready=20)
    def qf(j, jq):
        f = j*7 + jq
        return (vr(32 + 4*f, 4), True) if f < 20 else (ar(224 + 4*(f - 20), 4), False)
    last = 17*8
    for j in range(4):
        rdy = (last + 2*j + 1)*7 + 6 + 3
        for jq in range(7):
            f = j*7 + jq
            A0, A1 = qacc(2*j, jq), qacc(2*j+1, jq)
            if f < 20:
                d = 32 + 4*f
                S.fill(f"v_cvt_pk_bf16_f32 v{d}, v{A0}, v{A0+1}", ready=rdy)
                S.fill(f"v_cvt_pk_bf16_f32 v{d+1}, v{A0+2}, v{A0+3}", ready=rdy)
                S.fill(f"v_cvt_pk_bf16_f32 v{d+2}, v{A1}, v{A1+1}", ready=rdy)
                S.fill(f"v_cvt_pk_bf16_f32 v{d+3}, v{A1+2}, v{A1+3}", ready=rdy)
            else:
                d = 224 + 4*(f - 20)
                for k, (x, y) in enumerate(((A0, A0+1), (A0+2, A0+3), (A1, A1+1), (A1+2, A1+3))):
                    S.fill(f"v_cvt_pk_bf16_f32 v{V_T+k}, v{x}, v{y}", ready=rdy)
                for k in range(4):
                    S.fill(f"v_accvgpr_write_b32 a{d+k}, v{V_T+k}", ready=rdy)
    S.F.insert(len(S.F) - 7*8 + 0, ("s_nop 7", 4, 10**9 - 1, 10**9 - 1)) if False else None
    S.emit_tail_nop = True
    NMq = len(S.M)
    head = [f for f in S.F if f[2] < NMq]
    tail = [f for f in S.F if f[2] >= NMq]
    S.F = head
    S.emit()
    a("s_nop 7")
    a("s_nop 7")
    for ins, c_, r_, d_ in tail: a(ins)
    for k in range(72): a(f"v_accvgpr_write_b32 a{k}, 0")
    st()
    KF = 112; VF = 144; SB = 176; PB = 200; NEG = 212
    def sbuf(jq): return SB + 8*(0 if jq == 0 else 1 + (jq - 1) % 2)
    def pbuf(jq): return PB + 4*(0 if jq == 0 else 1 + (jq - 1) % 2)
    def oacc(T, jq): return (T*7 + jq)*4
    for k in range(28): a(f"v_mov_b32 v{NEG+k}, 0")
    a(f"s_mov_b64 s[{S_FIRST}:{S_FIRST+1}], -1")
    tr.wait_lds(("X", 17), ("A", 143))
    a("s_waitcnt lgkmcnt(0)")
    a("s_barrier")
    for it in dma_tile("K", (S_WR, 16384), (None, 8192), ("kv", 2)) + dma_tile("V", (S_WR, 24576), (None, 8192), ("kv", 3)) + dma_tile("K", (S_WR, 32768), (None, 16384), ("kv", 4)):
        emit_item(it)
    if C.warm:
        WSRD = 84
        a(f"s_mul_i32 s6, s{P+3}, {8*128*1152}")
        srd(WSRD, WO, "s6", 0, 8*128*1152)
        a(f"s_lshl_b32 s6, s{P+9}, 7")
        a(f"v_lshlrev_b32 v{V_T}, 7, v{V_LANE}")
        a(f"v_mov_b32 v{V_T+1}, 0x7fffff00")
        a(f"v_cmp_gt_u32 vcc, 36, v{V_LANE}")
        a("s_nop 1")
        a(f"v_cndmask_b32 v{V_T}, v{V_T+1}, v{V_T}, vcc")
        tr.vmem(f"buffer_load_dword v{NEG+28}, v{V_T}, s[{WSRD}:{WSRD+3}], s6 offen", "warm")
        a(f"s_add_u32 s6, s6, {36*128}")
        tr.vmem(f"buffer_load_dword v{NEG+28}, v{V_T}, s[{WSRD}:{WSRD+3}], s6 offen", "warm")
    def kaddr():
        ops = [f"v_add_u32 v{V_T+4}, s{S_RD}, v{V_KL}"]
        for k in range(8): ops.append(f"v_xor_b32 v{V_A+k}, {k*32}, v{V_T+4}")
        return ops
    def vaddr():
        ops = [f"v_add_u32 v{V_T+4}, s{S_RD}, v{V_VL}"]
        for T in range(8): ops.append(f"v_xor_b32 v{V_A+T}, {T*32}, v{V_T+4}")
        return ops
    def kreads():
        out = []
        for kt in range(2):
            for j in range(4):
                for p in range(2):
                    out.append(f"ds_read_b64 {vr(KF + (kt*4 + j)*4 + 2*p, 2)}, v{V_A + 2*j + p} offset:{kt*4096}")
        return out
    def vreads():
        out = []
        for T in range(8):
            for p in range(2):
                out.append(f"ds_read_b64_tr_b16 {vr(VF + 4*T + 2*p, 2)}, v{V_A+T} offset:{p*4096}")
        return out
    def adv_rd():
        return [f"s_add_u32 s{S_RD}, s{S_RD}, 8192", f"s_cmp_eq_u32 s{S_RD}, s{S_WREND}", f"s_cselect_b32 s{S_RD}, s{S_WR}, s{S_RD}"]
    def refill(kind):
        ins = []
        for it in dma_tile(kind, (S_RD, 0), (S_GOFF, 0), None):
            ins += it[0] + [it[1]]
        return ins
    def qk_list(jq):
        out = []
        for j in range(4):
            for kt in range(2):
                d = vr(sbuf(jq) + 4*kt, 4)
                fr, isv = qf(j, jq)
                cop = vr(NEG + 4*jq, 4) if j == 0 else d
                out.append(f"{MF} {d}, {vr(KF + (kt*4 + j)*4, 4)}, {fr}, {cop}")
        return out
    def pv_list(jq):
        return [f"{MF} {ar(oacc(T, jq), 4)}, {vr(VF + 4*T, 4)}, {vr(pbuf(jq), 4)}, {ar(oacc(T, jq), 4)}" for T in range(8)]
    def softmax(jq):
        Sb = sbuf(jq); Pb = pbuf(jq)
        T = [V_T + i for i in range(4)]
        ops = []
        def e(k):
            ops.append((f"v_mul_f32 v{T[k%4]}, s{S_SCALE}, v{Sb+k}", 4))
        def x(k):
            ops.append((f"v_exp_f32 v{T[k%4]}, v{T[k%4]}", 8))
        e(0); e(1); x(0); x(1)
        for j in range(4):
            if 2*j+2 < 8:
                e(2*j+2); e(2*j+3); x(2*j+2); x(2*j+3)
            else:
                ops.append(("s_nop 0", 4))
            A_, B_ = T[(2*j) % 4], T[(2*j+1) % 4]
            if j == 0: ops.append((f"v_add_f32 v{V_TS}, v{A_}, v{B_}", 4))
            else:
                ops.append((f"v_add_f32 v{V_TS}, v{V_TS}, v{A_}", 4))
                ops.append((f"v_add_f32 v{V_TS}, v{V_TS}, v{B_}", 4))
            ops.append((f"v_cvt_pk_bf16_f32 v{Pb+j}, v{A_}, v{B_}", 4))
        return ops
    a(f"s_mov_b32 s{S_RD}, s{S_WR}")
    tr.wait_vm(("kv", 0))
    for o in kaddr(): a(o)
    for o in kreads(): a(o)
    a("s_waitcnt lgkmcnt(0)")
    a(f"s_mov_b32 s{S_GOFF}, 16384")
    for o in refill("V"): a(o)
    for o in adv_rd(): a(o)
    a("s_waitcnt vmcnt(32)")
    for o in vaddr(): a(o)
    for o in vreads(): a(o)
    for m in qk_list(0): a(m)
    a("s_waitcnt lgkmcnt(0)")
    a(f"s_mov_b32 s{S_GOFF}, 24576")
    for o in refill("K"): a(o)
    for o in adv_rd(): a(o)
    a(f"s_mov_b32 s{S_CNT}, 0")
    a(f"s_mov_b32 s{S_GOFF}, 24576")
    a("s_nop 7")
    a.label("L_A")
    tr.lds = []; tr.vm = []
    S = Sched(tr, budget=8)
    blocks = []
    for jq in range(7):
        q0 = len(S.M)
        for m in (qk_list(jq+1) if jq < 6 else qk_list(0)): S.mfma(m)
        p0 = len(S.M)
        for m in pv_list(jq): S.mfma(m)
        blocks.append((q0, p0))
    for jq in range(7):
        rdy = -1 if jq == 0 else blocks[jq-1][1] + 2
        due = blocks[jq][1] - 2
        for ins, c_ in softmax(jq): S.fill(ins, ready=rdy, due=due, cost=c_)
        S.fill(f"v_cmp_nge_f32 vcc, s{S_THR}, v{V_TS}", ready=rdy, due=due)
        S.fill(f"s_or_b64 vcc, vcc, s[{S_FIRST}:{S_FIRST+1}]", ready=rdy, due=due)
        S.fill(f"s_cbranch_vccnz L_rare{jq}", ready=rdy, due=due)
        S.fill(f"L_rare{jq}_ret:", ready=rdy, due=due, cost=0)
        S.fill(f"v_add_f32 v{V_L+jq}, v{V_L+jq}, v{V_TS}", ready=rdy, due=due)
    gk = blocks[5][1]
    def kreload():
        tr("s_waitcnt vmcnt(32)")
        for o in kaddr(): tr(o)
        for o in kreads(): tr(o)
    S.at(gk - 1, kreload, cost=100)
    def kdone():
        tr("s_waitcnt lgkmcnt(0)")
        for o in refill("V"): tr(o)
        for o in adv_rd(): tr(o)
    S.at(blocks[6][0] - 1, kdone, cost=100)
    S.emit()
    a("s_waitcnt vmcnt(32)")
    for o in vaddr(): a(o)
    for o in vreads(): a(o)
    a(f"s_add_u32 s{S_GOFF}, s{S_GOFF}, 8192")
    a("s_waitcnt lgkmcnt(0)")
    for o in refill("K"): a(o)
    for o in adv_rd(): a(o)
    a(f"s_mov_b64 s[{S_FIRST}:{S_FIRST+1}], 0")
    a(f"s_add_u32 s{S_CNT}, s{S_CNT}, 1")
    a(f"s_cmp_lt_u32 s{S_CNT}, 16")
    a("s_cbranch_scc1 L_A")
    st()
    V_OW = 9
    a(f"v_lshlrev_b32 v{V_OW}, 4, v{V_LANE}")
    a(f"v_add_u32 v{V_OW}, s{S_WR}, v{V_OW}")
    a("s_waitcnt vmcnt(0)")
    a("s_nop 7")
    for jq in range(7):
        for o in xlane("v_add_f32", V_L + jq, V_T): a(o)
        a(f"v_rcp_f32 v{V_L+jq}, v{V_L+jq}")
        for jp in range(4):
            b = 32 + ((jq*4 + jp) % 4)*16
            for k in range(4):
                a(f"v_accvgpr_read_b32 v{b+k}, a{oacc(2*jp, jq)+k}")
                a(f"v_accvgpr_read_b32 v{b+4+k}, a{oacc(2*jp+1, jq)+k}")
            for k in range(8):
                a(f"v_mul_f32 v{b+k}, v{b+k}, v{V_L+jq}")
            for k in range(4):
                a(f"v_cvt_pk_bf16_f32 v{b+8+k}, v{b+2*k}, v{b+2*k+1}")
            a(f"ds_write_b128 v{V_OW}, {vr(b+8, 4)} offset:{(jq*4 + jp)*1024}")
    V_DO = 10
    V_OA = 13
    V_BA = 14
    a("s_mov_b32 s6, 0x2aaaaaab")
    a("s_movk_i32 s7, 1152")
    for i in range(3):
        a(f"v_add_u32 v{t0}, {64*i}, v{V_LANE}")
        a(f"v_mul_hi_u32 v{t1}, v{t0}, s6")
        a(f"v_mul_u32_u24 v{t2}, 6, v{t1}")
        a(f"v_sub_u32 v{t2}, v{t0}, v{t2}")
        a(f"v_mul_lo_u32 v{t1}, v{t1}, s7")
        a(f"v_lshlrev_b32 v{t2}, 4, v{t2}")
        a(f"v_add_u32 v{V_DO+i}, v{t1}, v{t2}")
    a(f"v_lshrrev_b32 v{t0}, 4, v{V_LANE}")
    a(f"v_bfe_u32 v{t1}, v{V_LANE}, 2, 2")
    a(f"v_lshl_add_u32 v{t0}, v{t0}, 2, v{t1}")
    a(f"v_mul_u32_u24 v{t0}, 96, v{t0}")
    a(f"v_and_b32 v{t1}, 3, v{V_LANE}")
    a(f"v_lshl_add_u32 v{t0}, v{t1}, 3, v{t0}")
    a(f"s_add_u32 s6, s{S_WR}, 28672")
    a(f"v_add_u32 v{V_OA}, s6, v{t0}")
    a(f"v_lshlrev_b32 v{t0}, 4, v{V_LANE}")
    for hh in range(4):
        a(f"v_add_u32 v{V_BA+hh}, {hh*WR}, v{t0}")
    tr.lds = []; tr.vm = []
    def dma_wo(pi):
        kap, gam = divmod(pi, 3)
        items = []
        for i in range(3):
            items.append(([f"s_add_u32 m0, s{S_WR}, {28672 + (pi % 4)*3072 + i*1024}"] + ([f"s_mov_b32 s{S_T}, {kap*32*1152 + gam*96}"] if i == 0 else ["s_nop 0"]),
                          f"buffer_load_dwordx4 v{V_DO+i}, s[{SRD_WO}:{SRD_WO+3}], s{S_T} offen lds", ("wo", pi)))
        return items
    for pi in range(3):
        for it in dma_wo(pi): emit_item(it)
    a("s_waitcnt lgkmcnt(0)")
    a("s_barrier")
    st()
    BF = [32, 60]
    AB = 88; NBO = 4
    def oa(ct, jq): return (ct*7 + jq)*4
    def bread(kap, jq):
        hh, jp = divmod(kap, 4)
        tr.ds(f"ds_read_b128 {vr(BF[kap%2] + 4*jq, 4)}, v{V_BA+hh} offset:{(jq*4 + jp)*1024}", ("B", kap))
    def aread(tile, k):
        pi, cl = divmod(tile, 3)
        tr.ds(f"ds_read_b64_tr_b16 {vr(AB + 4*(tile % NBO) + 2*k, 2)}, v{V_OA} offset:{(pi % 4)*3072 + cl*32 + k*1536}", ("A", tile))
    for jq in range(7): bread(0, jq)
    tr.wait_vm(("wo", 0))
    for tile in range(AH):
        aread(tile, 0); aread(tile, 1)
    S = Sched(tr)
    NT = 16*9
    for tile in range(NT):
        kap, ct = divmod(tile, 9)
        for jq in range(7):
            cop = "0" if kap == 0 else ar(oa(ct, jq), 4)
            S.mfma(f"{MF} {ar(oa(ct, jq), 4)}, {vr(AB + 4*(tile % NBO), 4)}, {vr(BF[kap%2] + 4*jq, 4)}, {cop}")
    for tile in range(NT):
        kap, ct = divmod(tile, 9)
        g0 = tile*7
        need = [("A", tile)] + ([("B", kap)] if ct == 0 else [])
        S.at(g0 - 1, (lambda need=need: tr.wait_lds(*need)))
        nx = tile + AH
        if nx < NT:
            if nx % 3 == 0:
                S.at(g0, (lambda nx=nx: tr.wait_vm(("wo", nx // 3))))
            S.at(g0 + 1, (lambda nx=nx: aread(nx, 0)))
            S.at(g0 + 2, (lambda nx=nx: aread(nx, 1)))
        if tile % 3 == 2:
            pi = tile // 3
            if pi + 4 < 48:
                for k, it in enumerate(dma_wo(pi + 4)):
                    S.at(g0 + 3 + k, (lambda it=it: emit_item(it)), cost=12)
        if tile == 0:
            for k, it in enumerate(dma_wo(3)):
                S.at(g0 + 3 + k, (lambda it=it: emit_item(it)), cost=12)
        if ct == 4 and kap + 1 < 16:
            for jq in range(7):
                S.at(g0 + 3 + (jq % 4) + (jq // 4)*7, (lambda kap=kap, jq=jq: bread(kap + 1, jq)))
    S.emit()
    st()
    a("s_nop 7")
    a("s_nop 7")
    a(f"v_lshlrev_b32 v1, 4, v{V_LANE}")
    a(f"v_lshlrev_b32 v2, 3, v{V_LANE}")
    a(f"s_mov_b32 s{S_T}, 0")
    for i in range(32):
        b = 32 + (i % 4)*16
        nt_ = 2 if i < 31 else 1
        for k in range(4*nt_):
            a(f"v_accvgpr_read_b32 v{b+k}, a{8*i+k}")
        for k in range(2*nt_):
            a(f"v_cvt_pk_bf16_f32 v{b+8+k}, v{b+2*k}, v{b+2*k+1}")
        off = (i % 4)*1024
        if nt_ == 2:
            a(f"buffer_store_dwordx4 {vr(b+8, 4)}, v1, s[{SRD_WS}:{SRD_WS+3}], s{S_T} offen offset:{off}{C.st_flags}")
        else:
            a(f"v_mov_b32 v{b+10}, 0")
            a(f"v_mov_b32 v{b+11}, 0")
            a(f"buffer_store_dwordx4 {vr(b+8, 4)}, v1, s[{SRD_WS}:{SRD_WS+3}], s{S_T} offen offset:{off}{C.st_flags}")
        if i % 4 == 3: a(f"s_add_u32 s{S_T}, s{S_T}, 4096")
    if C.stamp:
        st()
        a("s_waitcnt vmcnt(0)")
        st()
        a("s_memrealtime s[68:69]")
        a("s_waitcnt lgkmcnt(0)")
        a(f"v_writelane_b32 v{V_STAMP}, s68, 63")
        a(f"v_writelane_b32 v{V_STAMP}, s70, 62")
        a(f"s_mov_b32 s{SRD_WS}, s{WS}")
        a(f"s_and_b32 s{SRD_WS+1}, s{WS+1}, 0xffff")
        a(f"s_mov_b32 s{SRD_WS+2}, 0x4000000")
        a(f"s_lshl_b32 s{S_T}, s2, 2")
        a(f"s_add_u32 s{S_T}, s{S_T}, s{S_WAVE}")
        a(f"s_lshl_b32 s{S_T}, s{S_T}, 8")
        a(f"s_add_u32 s{S_T}, s{S_T}, {40<<20}")
        a(f"v_lshlrev_b32 v1, 2, v{V_LANE}")
        a(f"buffer_store_dword v{V_STAMP}, v1, s[{SRD_WS}:{SRD_WS+3}], s{S_T} offen")
    a("s_endpgm")
    for jq in range(7):
        Sb = sbuf(jq)
        a.label(f"L_rare{jq}")
        a("s_nop 7")
        d, tm = V_T, V_T + 1
        a(f"v_max3_f32 v{d}, v{Sb}, v{Sb+1}, v{Sb+2}")
        a(f"v_max3_f32 v{tm}, v{Sb+3}, v{Sb+4}, v{Sb+5}")
        a(f"v_max3_f32 v{d}, v{d}, v{Sb+6}, v{Sb+7}")
        a(f"v_max_f32 v{d}, v{d}, v{tm}")
        for o in xlane("v_max_f32", d, tm): a(o)
        a(f"s_cmp_eq_u32 s{S_CNT}, 0")
        a(f"s_cbranch_scc1 L_rare{jq}_first")
        a(f"v_max_f32 v{d}, 0, v{d}")
        a(f"v_mul_f32 v{tm}, s{S_NSC}, v{d}")
        a(f"v_exp_f32 v{tm}, v{tm}")
        a("s_nop 0")
        for T in range(8):
            for k in range(4):
                a(f"v_accvgpr_read_b32 v{V_T+2}, a{oacc(T, jq)+k}")
                a(f"v_mul_f32 v{V_T+2}, v{V_T+2}, v{tm}")
                a(f"v_accvgpr_write_b32 a{oacc(T, jq)+k}, v{V_T+2}")
        a(f"v_mul_f32 v{V_L+jq}, v{V_L+jq}, v{tm}")
        a.label(f"L_rare{jq}_first")
        for k in range(8): a(f"v_sub_f32 v{Sb+k}, v{Sb+k}, v{d}")
        for k in range(4): a(f"v_sub_f32 v{NEG+4*jq+k}, v{NEG+4*jq+k}, v{d}")
        for ins, c_ in softmax(jq): a(ins)
        a("s_nop 1")
        a(f"s_branch L_rare{jq}_ret")
    a.label("L_exit")
    a("s_endpgm")
    return a.text()

def gen_reduce():
    a = Asm()
    a("s_cmp_ge_u32 s2, 1024")
    a("s_cbranch_scc1 R_exit")
    a("s_load_dwordx2 s[4:5], s[0:1], 96")
    a("s_load_dwordx2 s[6:7], s[0:1], 80")
    a("v_lshrrev_b32 v1, 6, v0")
    a("v_and_b32 v2, 63, v0")
    a("v_readfirstlane_b32 s8, v1")
    a("s_lshl_b32 s9, s2, 2")
    a("s_add_u32 s9, s9, s8")
    a("s_and_b32 s12, s9, 31")
    a("s_lshr_b32 s11, s9, 5")
    a("s_and_b32 s13, s11, 3")
    a("s_lshr_b32 s14, s11, 2")
    a("s_lshl_b32 s15, s14, 20")
    a("s_lshl_b32 s16, s13, 15")
    a("s_add_u32 s15, s15, s16")
    a("s_lshl_b32 s16, s12, 10")
    a("s_add_u32 s15, s15, s16")
    a("s_waitcnt lgkmcnt(0)")
    a("s_mov_b32 s20, s4")
    a("s_and_b32 s21, s5, 0xffff")
    a(f"s_mov_b32 s22, {256*131072}")
    a("s_mov_b32 s23, 0x20000")
    a("s_mov_b32 s24, s6")
    a("s_and_b32 s25, s7, 0xffff")
    a(f"s_mov_b32 s26, {16*112*1152*2}")
    a("s_mov_b32 s27, 0x20000")
    a("v_lshlrev_b32 v5, 4, v2")
    for p in range(8):
        a(f"buffer_load_dwordx4 v[{16+4*p}:{19+4*p}], v5, s[20:23], s15 offen")
        if p < 7: a("s_add_u32 s15, s15, 131072")
    a("v_and_b32 v3, 15, v2")
    a("v_lshrrev_b32 v4, 4, v2")
    a("s_and_b32 s18, s14, 15")
    a("s_lshr_b32 s19, s14, 4")
    a("s_mul_i32 s18, s18, 112")
    a("s_movk_i32 s28, 2304")
    a("v_add_u32 v6, s18, v3")
    a("v_mul_lo_u32 v6, v6, s28")
    a("v_lshlrev_b32 v4, 3, v4")
    a("v_add_u32 v6, v6, v4")
    a("s_mul_i32 s19, s19, 1152")
    a("s_mul_i32 s29, s13, 288")
    a("s_add_u32 s19, s19, s29")
    for k in range(2):
        a(f"s_lshl_b32 s30, s12, 1")
        if k: a("s_add_u32 s30, s30, 1")
        a(f"s_mul_i32 s31, s30, {(2**16 + 6)//7}")
        a("s_lshr_b32 s31, s31, 16")
        a("s_mul_i32 s32, s31, 7")
        a("s_sub_u32 s32, s30, s32")
        a(f"s_mul_i32 s32, s32, {16*2304}")
        a("s_lshl_b32 s31, s31, 5")
        a("s_add_u32 s32, s32, s31")
        a(f"s_add_u32 s{33+k}, s32, s19")
    a("s_cmp_eq_u32 s12, 31")
    a("s_cselect_b32 s34, 0x7f000000, s34")
    for p in range(8):
        a(f"s_waitcnt vmcnt({7-p})")
        for k in range(4):
            src = 16 + 4*p + k
            if p == 0:
                a(f"v_lshlrev_b32 v{48+2*k}, 16, v{src}")
                a(f"v_and_b32 v{49+2*k}, 0xffff0000, v{src}")
            else:
                a(f"v_lshlrev_b32 v8, 16, v{src}")
                a(f"v_and_b32 v9, 0xffff0000, v{src}")
                a(f"v_add_f32 v{48+2*k}, v{48+2*k}, v8")
                a(f"v_add_f32 v{49+2*k}, v{49+2*k}, v9")
    for k in range(4):
        a(f"v_cvt_pk_bf16_f32 v{56+k}, v{48+2*k}, v{49+2*k}")
    a("buffer_store_dwordx2 v[56:57], v6, s[24:27], s33 offen")
    a("buffer_store_dwordx2 v[58:59], v6, s[24:27], s34 offen")
    a.label("R_exit")
    a("s_endpgm")
    return a.text()

def generate(path):
    body = gen_main()
    red = gen_reduce()
    ll = [("attn_main_kernel", 256, 256, 163840), ("attn_reduce_kernel", 1024, 256, 0)]
    if C.only == "main": ll = ll[:1]
    txt = make_file(ll, [("attn_main_kernel", body, 512, 96, 256), ("attn_reduce_kernel", red, 64, 40, 64)])
    open(path, "w").write(txt)

if __name__ == "__main__":
    out = sys.argv[1] if len(sys.argv) > 1 else "w.s"
    for kv in sys.argv[2:]:
        k, v = kv.split("=")
        setattr(C, k, eval(v))
    generate(out)
```

```python
import sys, struct, math
from asmlib import *
from gen_w import Tracker, Sched, xlane, vr, ar, f2u, MF, gen_reduce

class Cfg:
    nt_kv = True
    THR = 0x47800000
    stamp = False
    st_flags = ""
    only = None
    AH = 2
    nobar = False
    kvgap = 10
    codepf = True
    qnt = ""
    nodma = False
    noxread = False
C = Cfg()

WR = 40960
S_WAVE = 3
SRD_X = 8; SRD_WQ = 12; SRD_K = 16; SRD_V = 20; SRD_WO = 24; SRD_WS = 28
S_WR = 32; S_T = 33; S_T2 = 34; S_CNT = 35
S_RD = 36; S_GOFF = 37
S_THR = 38; S_SCALE = 39; S_NSC = 40
S_QO = 41
S_FIRST = 42
S_WREND = 44
S_XO = 45
S_XLDS = 46
S_OO = 47
S_P = 48
WSRD = 84
S_XTOG = 60
V_LANE = 0
V_DK = 1; V_DV = 5; V_KL = 7; V_VL = 8
V_A = 9; V_T = 17; V_TS = 23; V_L = 24; V_STAMP = 31

def gen_main():
    a = Asm()
    tr = Tracker(a)
    P = S_P
    nt = " nt" if C.nt_kv else ""
    stamp_i = [0]
    def st():
        if C.stamp:
            a("s_memtime s[64:65]")
            a("s_memrealtime s[66:67]")
            a("s_waitcnt lgkmcnt(0)")
            a(f"v_writelane_b32 v{V_STAMP}, s64, {stamp_i[0]}")
            a(f"v_writelane_b32 v{V_STAMP}, s66, {32 + stamp_i[0]}")
            tr.lds = []
        stamp_i[0] += 1
    X, K, V, WQ, WO, WS = 72, 74, 76, 78, 80, 82
    a("s_cmp_ge_u32 s2, 256")
    a("s_cbranch_scc1 L_exit")
    if C.codepf:
        a("s_getpc_b64 s[86:87]")
        a.label("L_pc")
        a("v_lshrrev_b32 v1, 6, v0")
        a("s_lshr_b32 s6, s2, 3")
        a("v_lshl_add_u32 v1, s6, 2, v1")
        a("v_mul_u32_u24 v2, 43691, v1")
        a("v_lshrrev_b32 v2, 18, v2")
        a("v_mul_u32_u24 v2, 6, v2")
        a("v_sub_u32 v1, v1, v2")
        a("v_lshlrev_b32 v1, 13, v1")
        a("v_and_b32 v2, 63, v0")
        a("v_lshl_add_u32 v1, v2, 7, v1")
        a("v_min_u32 v1, (L_code_end - L_pc - 4), v1")
        a("v_and_b32 v1, -4, v1")
        a("global_load_dword v23, v1, s[86:87]")
    a(f"s_and_b32 s{P+2}, s2, 1")
    a(f"s_mul_i32 s{P+7}, s{P+2}, 40")
    a(f"s_add_u32 s4, s0, s{P+7}")
    a("s_addc_u32 s5, s1, 0")
    a(f"s_load_dwordx2 s[{X}:{X+1}], s[4:5], 0")
    a(f"s_load_dwordx2 s[{WQ}:{WQ+1}], s[4:5], 24")
    a(f"s_load_dwordx2 s[{K}:{K+1}], s[4:5], 8")
    a(f"s_load_dwordx2 s[{V}:{V+1}], s[4:5], 16")
    a(f"s_load_dwordx2 s[{WO}:{WO+1}], s[4:5], 32")
    a(f"s_load_dwordx2 s[{WS}:{WS+1}], s[0:1], 96")
    if C.stamp: a("s_memrealtime s[70:71]")
    a(f"s_and_b32 s{P}, s2, 7")
    a(f"s_lshr_b32 s{P+1}, s2, 3")
    a(f"s_and_b32 s{P+5}, s{P+1}, 1")
    a(f"s_lshr_b32 s{P+3}, s{P}, 1")
    a(f"s_lshr_b32 s{P+4}, s{P+1}, 1")
    a(f"s_lshl_b32 s{P+6}, s{P+3}, 1")
    a(f"s_add_u32 s{P+6}, s{P+6}, s{P+5}")
    a("v_lshrrev_b32 v1, 6, v0")
    a(f"v_and_b32 v{V_LANE}, 63, v0")
    a(f"v_readfirstlane_b32 s{S_WAVE}, v1")
    L = V_LANE
    t0, t1, t2, t3, n, g, r, cc = 232, 233, 234, 235, 236, 237, 238, 239
    V_DQ = 9; V_DX = 13; V_XA = 14; V_QA = 15
    a(f"v_lshrrev_b32 v{t0}, 3, v{L}")
    a(f"v_and_b32 v{t1}, 7, v{L}")
    a(f"v_bfe_u32 v{t3}, v{L}, 4, 1")
    a(f"v_lshlrev_b32 v{t3}, 1, v{t3}")
    a(f"v_xor_b32 v{t3}, v{t3}, v{t1}")
    a(f"v_lshlrev_b32 v{t3}, 4, v{t3}")
    a(f"v_lshlrev_b32 v{t2}, 13, v{t0}")
    a(f"v_add_u32 v{V_DQ}, v{t2}, v{t3}")
    a(f"v_xor_b32 v{V_DQ+1}, 64, v{V_DQ}")
    a(f"v_add_u32 v{V_DQ+1}, {65536-1024}, v{V_DQ+1}")
    a(f"v_add_u32 v{V_DQ+2}, {2*(65536-1024)}, v{V_DQ}")
    a(f"v_add_u32 v{V_DQ+3}, {2*(65536-1024)}, v{V_DQ+1}")
    a(f"v_lshrrev_b32 v{g}, 4, v{L}")
    a(f"v_and_b32 v{cc}, 3, v{L}")
    a(f"v_lshrrev_b32 v{t0}, 2, v{L}")
    a(f"v_sub_u32 v{t1}, 0, v{g}")
    a(f"v_and_b32 v{t1}, 3, v{t1}")
    a(f"v_xor_b32 v{t1}, v{t1}, v{cc}")
    a(f"v_lshlrev_b32 v{t1}, 4, v{t1}")
    a(f"v_mul_u32_u24 v{t2}, 1152, v{t0}")
    a(f"v_add_u32 v{V_DX}, v{t2}, v{t1}")
    a(f"s_mul_i32 s{S_WR}, s{S_WAVE}, {WR}")
    a(f"s_mul_i32 s{S_XO}, s{S_WAVE}, {16*1152}")
    a(f"s_lshl_b32 s{S_XLDS}, s{S_WAVE}, 10")
    a(f"s_lshl_b32 s6, s{P+6}, 2")
    a(f"s_add_u32 s{P+8}, s6, s{S_WAVE}")
    a(f"s_mov_b32 s{S_QO}, 0")
    a("s_waitcnt lgkmcnt(0)")
    def srd(dst, ptr, off_lo, off_hi, size):
        a(f"s_add_u32 s{dst}, s{ptr}, {off_lo}")
        a(f"s_addc_u32 s{dst+1}, s{ptr+1}, {off_hi}")
        a(f"s_and_b32 s{dst+1}, s{dst+1}, 0xffff")
        a(f"s_mov_b32 s{dst+2}, {size}")
        a(f"s_mov_b32 s{dst+3}, 0x20000")
    if C.stamp: a("s_memrealtime s[88:89]")
    a(f"s_lshl_b32 s6, s{P+8}, 8")
    a(f"s_sub_u32 s7, {576*8192}, s6")
    srd(SRD_WQ, WQ, "s6", 0, "s7")
    a(f"s_mul_i32 s6, s{P+4}, 129024")
    srd(SRD_X, X, "s6", 0, 129024)
    XSL = [32768, WR + 32768]
    def dma_wq(ksr, h):
        return [(([f"s_add_u32 m0, s{S_WR}, {16384 + (ksr%2)*8192 + h*4096}",
                   f"s_add_u32 s{S_T}, s{S_QO}, {32*ksr*8192 + h*128}"] if p == 0 else []),
                 f"buffer_load_dwordx4 v{V_DQ + p}, s[{SRD_WQ}:{SRD_WQ+3}], s{S_T} offen offset:{p*1024}{C.qnt} lds", ("wq", ksr, h)) for p in range(4)]
    def dma_x(pr, par=0):
        return [([f"s_add_u32 m0, s{S_XLDS}, {32768 + par*2*WR + sub*WR + k*4096}",
                  f"s_add_u32 s{S_T}, s{S_XO}, {k*64*1152 + (2*pr + sub)*64}"],
                 f"buffer_load_dwordx4 v{V_DX}, s[{SRD_X}:{SRD_X+3}], s{S_T} offen{C.qnt} lds", ("x", pr)) for sub in range(2) for k in range(2)]
    def emit_item(it):
        for s_ in it[0]: tr(s_)
        tr.vmem(it[1], it[2])
    for it in dma_wq(0, 0) + dma_x(0) + dma_wq(0, 1) + dma_wq(1, 0) + dma_wq(1, 1) + dma_x(1, 1): emit_item(it)
    a(f"s_mov_b32 s{S_XTOG}, {2*WR}")
    if C.stamp: a("s_memrealtime s[90:91]")
    a(f"s_lshl_b32 s6, s{P+4}, 5")
    a(f"s_add_u32 s6, s6, s{P+8}")
    a(f"s_lshl_b32 s6, s6, 17")
    srd(SRD_K, K, "s6", 0, 131072)
    srd(SRD_V, V, "s6", 0, 131072)
    a(f"s_lshl_b32 s6, s{P+3}, 11")
    a(f"s_sub_u32 s7, {576*8192}, s6")
    srd(WSRD, WQ, "s6", 0, "s7")
    a(f"s_lshl_b32 s6, s{P+1}, 2")
    a(f"s_add_u32 s6, s6, s{S_WAVE}")
    a(f"s_mul_i32 s{P+9}, s6, 72")
    a(f"v_mov_b32 v{t1}, 0x7fffff00")
    a(f"v_cmp_gt_u32 vcc, 36, v{L}")
    for k in range(2):
        a(f"v_add_u32 v{t0}, s{P+9}, v{L}")
        if k: a(f"v_add_u32 v{t0}, 36, v{t0}")
        a(f"v_lshrrev_b32 v{t2}, 4, v{t0}")
        a(f"v_lshlrev_b32 v{t2}, 13, v{t2}")
        a(f"v_and_b32 v{t0}, 15, v{t0}")
        a(f"v_lshl_add_u32 v{t0}, v{t0}, 7, v{t2}")
        a(f"v_cndmask_b32 v{t0}, v{t1}, v{t0}, vcc")
        tr.vmem(f"buffer_load_dword v{V_TS}, v{t0}, s[{WSRD}:{WSRD+3}], 0 offen{C.qnt}", "warm")
    if C.stamp: a("s_memrealtime s[92:93]")
    if C.stamp: a(f"v_mov_b32 v{V_STAMP}, 0")
    a(f"v_and_b32 v{n}, 15, v{L}")
    a(f"v_bfe_u32 v{r}, v{L}, 2, 2")
    a(f"s_add_u32 s{S_WREND}, s{S_WR}, {WR}")
    a(f"s_mov_b32 s{S_THR}, {C.THR:#x}")
    sc = math.log2(math.e) / math.sqrt(128.0)
    a(f"s_mov_b32 s{S_SCALE}, {f2u(sc):#x}")
    a(f"s_mov_b32 s{S_NSC}, {f2u(-sc):#x}")
    a(f"v_lshrrev_b32 v{t0}, 1, v{r}")
    a(f"v_and_b32 v{t1}, 1, v{g}")
    a(f"v_lshl_or_b32 v{t0}, v{t1}, 1, v{t0}")
    a(f"v_lshlrev_b32 v{t0}, 1, v{t0}")
    a(f"v_lshrrev_b32 v{t1}, 1, v{cc}")
    a(f"v_xor_b32 v{t0}, v{t0}, v{t1}")
    a(f"v_lshlrev_b32 v{t0}, 4, v{t0}")
    a(f"v_lshl_add_u32 v{t1}, v{g}, 3, v{r}")
    a(f"v_lshl_add_u32 v{t0}, v{t1}, 7, v{t0}")
    a(f"v_and_b32 v{t1}, 1, v{cc}")
    a(f"v_lshl_add_u32 v{t0}, v{t1}, 3, v{t0}")
    a(f"s_add_u32 s6, s{S_WR}, 16384")
    a(f"v_add_u32 v{t0}, s6, v{t0}")
    for Tl in range(4): a(f"v_xor_b32 v{V_QA+Tl}, {Tl*32}, v{t0}")
    a(f"v_lshrrev_b32 v{t0}, 2, v{n}")
    a(f"v_sub_u32 v{t0}, 0, v{t0}")
    a(f"v_and_b32 v{t0}, 3, v{t0}")
    a(f"v_xor_b32 v{t0}, v{t0}, v{g}")
    a(f"v_lshlrev_b32 v{t0}, 4, v{t0}")
    a(f"v_lshl_add_u32 v{t0}, v{n}, 6, v{t0}")
    a(f"v_add_u32 v{V_XA}, 32768, v{t0}")
    a(f"v_and_b32 v{t1}, 15, v{L}")
    a(f"v_lshlrev_b32 v{t2}, 8, v{g}")
    for q in range(4):
        a(f"v_add_u32 v{t3}, {4*q}, v{g}")
        a(f"v_xor_b32 v{t3}, v{t3}, v{t1}")
        a(f"v_lshl_add_u32 v{V_DK+q}, v{t3}, 4, v{t2}")
    a(f"v_lshlrev_b32 v{t3}, 1, v{g}")
    a(f"v_xor_b32 v{t3}, v{t3}, v{t1}")
    a(f"v_lshl_add_u32 v{V_DV}, v{t3}, 4, v{t2}")
    a(f"v_xor_b32 v{V_DV+1}, 128, v{V_DV}")
    a(f"v_lshrrev_b32 v{t0}, 1, v{g}")
    a(f"v_xor_b32 v{t0}, v{t0}, v{n}")
    a(f"v_lshlrev_b32 v{t0}, 4, v{t0}")
    a(f"v_lshl_add_u32 v{t0}, v{n}, 8, v{t0}")
    a(f"v_and_b32 v{t1}, 1, v{g}")
    a(f"v_lshl_add_u32 v{V_KL}, v{t1}, 3, v{t0}")
    a(f"v_lshl_add_u32 v{t0}, v{g}, 2, v{r}")
    a(f"v_and_b32 v{t1}, 7, v{t0}")
    a(f"v_lshlrev_b32 v{t1}, 1, v{t1}")
    a(f"v_lshrrev_b32 v{t2}, 1, v{cc}")
    a(f"v_xor_b32 v{t1}, v{t1}, v{t2}")
    a(f"v_lshlrev_b32 v{t1}, 4, v{t1}")
    a(f"v_lshl_add_u32 v{t0}, v{t0}, 8, v{t1}")
    a(f"v_and_b32 v{t1}, 1, v{cc}")
    a(f"v_lshl_add_u32 v{V_VL}, v{t1}, 3, v{t0}")
    def dma_tile(kind, lds_expr, goff_expr, tag):
        items = []
        for h in range(2):
            for q in range(4):
                pre = []
                if q == 0:
                    pre.append(f"s_add_u32 m0, s{lds_expr[0]}, {lds_expr[1] + h*4096}")
                    if goff_expr[0] is None: pre.append(f"s_mov_b32 s{S_T}, {goff_expr[1] + h*4096}")
                    else: pre.append(f"s_add_u32 s{S_T}, s{goff_expr[0]}, {goff_expr[1] + h*4096}")
                if kind == "K":
                    ins = f"buffer_load_dwordx4 v{V_DK+q}, s[{SRD_K}:{SRD_K+3}], s{S_T} offen offset:{q*1024}{nt} lds"
                else:
                    ins = f"buffer_load_dwordx4 v{V_DV + (q & 1)}, s[{SRD_V}:{SRD_V+3}], s{S_T} offen offset:{q*1024}{nt} lds"
                items.append((pre, ins, tag))
        return items
    if C.stamp: a("s_memrealtime s[94:95]")
    QACC = 32
    def qacc(T, jq): return QACC + (T*7 + jq)*4
    XF = [0, 28]; WB = 56; NB = 4; AH = C.AH
    for k in range(4): a(f"v_mov_b32 v{252+k}, 0")
    for jq in range(7): a(f"v_mov_b32 v{V_L+jq}, 0")
    a("s_nop 1")
    for k in range(80, 224, 16): a(f"v_mfma_f32_32x32x16_bf16 a[{k}:{k+15}], v[252:255], v[252:255], 0")
    st()
    def xread(ksr, jq):
        tr.ds(f"ds_read_b128 {ar(XF[ksr%2] + 4*jq, 4)}, v{V_XA} offset:{(ksr % 2)*WR + jq*1024}", ("X", ksr))
    def wread(tile, k):
        ksr, T = divmod(tile, 8)
        off = (ksr % 2)*8192 + (T // 4)*4096 + k*512
        tr.ds(f"ds_read_b64_tr_b16 {ar(WB + 4*(tile % NB) + 2*k, 2)}, v{V_QA + T % 4} offset:{off}", ("A", tile))
    tr.wait_vm(("x", 0), ("wq", 0, 0))
    a("s_barrier")
    if C.stamp: a("s_memrealtime s[96:97]")
    for jq in range(7): xread(0, jq)
    for tile in range(AH):
        wread(tile, 0); wread(tile, 1)
    a("s_waitcnt lgkmcnt(0)")
    a(f"s_mov_b32 s{S_CNT}, 0")
    vm_entry = [("wq", 0, 0)]*4 + [("wq", 0, 1)]*4 + [("wq", 1, 0)]*4 + [("x", 1)]*4 + [("wq", 1, 1)]*4
    def qf(j, jq):
        f = j*7 + jq
        return vr(32 + 4*f, 4) if f < 20 else ar(224 + 4*(f - 20), 4)
    def q_body(last, first=False):
        tr.lds = [("A", t_) for t_ in range(1, AH) for _ in range(2)]
        if not first: tr.vm = list(vm_entry)
        S = Sched(tr)
        NT = 16
        order = list(range(16))
        for tile in range(NT):
            ksr, T = divmod(tile, 8)
            for jq in range(7):
                cop = "0" if (first and ksr == 0) else vr(qacc(T, jq), 4)
                S.mfma(f"{MF} {vr(qacc(T, jq), 4)}, {ar(WB + 4*(tile % NB), 4)}, {ar(XF[ksr%2] + 4*jq, 4)}, {cop}")
        for tile in range(NT):
            ksr, T = divmod(tile, 8)
            g0 = tile*7
            nxt_tile = tile + 1
            nks, nT = divmod(nxt_tile, 8)
            if not (last and nxt_tile == 16):
                need = [("A", nxt_tile)] + ([("X", nks)] if nT == 0 else [])
                S.at(g0 + 6, (lambda need=need: tr.wait_lds(*need)))
            nx = tile + AH
            if not (last and nx >= 16):
                nks2, nT2 = divmod(nx, 8)
                if nT2 % 4 == 0:
                    S.at(g0, (lambda nks2=nks2, nT2=nT2: tr.wait_vm(("wq", nks2, nT2 // 4))))
                S.at(g0 + 1, (lambda nx=nx: wread(nx, 0)))
                S.at(g0 + 2, (lambda nx=nx: wread(nx, 1)))
            if T % 4 == 3 and not last:
                its = dma_wq(ksr + 2, T // 4)
                gaps = [g0 + 3, g0 + 4, g0 + 5, g0 + 6] if True else None
                for k, it in enumerate(its):
                    if not (C.nodma and not first): S.at(gaps[k], (lambda it=it: emit_item(it)), cost=(8 if k == 0 else 4))
            if T == 4 and ksr == 0:
                for jq in range(7):
                    S.at(g0 + 3 + (jq % 3) + (jq // 3)*7, (lambda jq=jq: xread(1, jq)))
            if T == 4 and ksr == 1 and not last:
                def midbar():
                    tr.wait_vm(("x", 1))
                    if not C.nobar: tr("s_barrier")
                    tr(f"v_add_u32 v{V_XA}, s{S_XTOG}, v{V_XA}")
                S.at(g0 + 3, midbar, cost=12)
                for k, it in enumerate(dma_x(2)):
                    S.at(g0 + 5 + 7*(k % 3) + (k // 3), (lambda it=it: emit_item(it)), cost=12)
                for jq in range(7):
                    S.at(g0 + 7 + 3 + (jq % 3) + (jq // 3)*7, (lambda jq=jq: xread(2, jq)))
        tail = []
        if last:
            kv = dma_tile("K", (S_WR, 0), (None, 0), ("kv", 0)) + dma_tile("V", (S_WR, 8192), (None, 0), ("kv", 1))
            for k, it in enumerate(kv):
                S.at(C.kvgap*7 + 3 + 2*k, (lambda it=it: emit_item(it)), cost=8)
            for j in range(4):
                rdy = (8 + 2*j + 1)*7 + 6 + 3
                for jq in range(7):
                    f = j*7 + jq
                    A0, A1 = qacc(2*j, jq), qacc(2*j+1, jq)
                    if f < 20:
                        d = 32 + 4*f
                        ops = [f"v_cvt_pk_bf16_f32 v{d}, v{A0}, v{A0+1}", f"v_cvt_pk_bf16_f32 v{d+1}, v{A0+2}, v{A0+3}",
                               f"v_cvt_pk_bf16_f32 v{d+2}, v{A1}, v{A1+1}", f"v_cvt_pk_bf16_f32 v{d+3}, v{A1+2}, v{A1+3}"]
                    else:
                        d = 224 + 4*(f - 20)
                        ops = [f"v_cvt_pk_bf16_f32 v{V_T+k}, v{x_}, v{y_}" for k, (x_, y_) in enumerate(((A0, A0+1), (A0+2, A0+3), (A1, A1+1), (A1+2, A1+3)))]
                        ops += [f"v_accvgpr_write_b32 a{d+k}, v{V_T+k}" for k in range(4)]
                    for o in ops:
                        if rdy < len(S.M): S.fill(o, ready=rdy)
                        else: tail.append(o)
        S.emit()
        return tail
    def q_adv():
        a(f"s_add_u32 s{S_QO}, s{S_QO}, {64*8192}")
        a(f"s_add_u32 s{S_XO}, s{S_XO}, 128")
        a(f"s_add_u32 s{S_XLDS}, s{S_XLDS}, s{S_XTOG}")
        a(f"s_sub_u32 s{S_XTOG}, 0, s{S_XTOG}")
    q_body(False, True)
    q_adv()
    a.label("L_Q")
    q_body(False)
    if C.stamp:
        a("s_memtime s[64:65]")
        a("s_waitcnt lgkmcnt(0)")
        a(f"s_add_u32 s66, s{S_CNT}, 8")
        a(f"v_mov_b32 v{V_TS}, s64")
        a(f"v_cmp_ne_u32 vcc, s66, v{V_LANE}")
        a("s_nop 1")
        a(f"v_cndmask_b32 v{V_STAMP}, v{V_TS}, v{V_STAMP}, vcc")
    q_adv()
    a(f"s_add_u32 s{S_CNT}, s{S_CNT}, 1")
    a(f"s_cmp_lt_u32 s{S_CNT}, 7")
    a("s_cbranch_scc1 L_Q")
    tail = q_body(True)
    a("s_waitcnt lgkmcnt(0)")
    a("s_barrier")
    for it in dma_tile("K", (S_WR, 16384), (None, 8192), ("kv", 2)) + dma_tile("V", (S_WR, 24576), (None, 8192), ("kv", 3)) + dma_tile("K", (S_WR, 32768), (None, 16384), ("kv", 4)):
        emit_item(it)
    for o in tail: a(o)
    st()
    KF = 112; VF = 144; SB = 176; PB = 200; NEG = 212
    def sbuf(jq): return SB + 8*(0 if jq == 0 else 1 + (jq - 1) % 2)
    def pbuf(jq): return PB + 4*(0 if jq == 0 else 1 + (jq - 1) % 2)
    def oacc(T, jq): return (T*7 + jq)*4
    for k in range(4): a(f"v_mov_b32 v{18+k}, 0")
    a("s_nop 1")
    for k in range(0, 80, 16): a(f"v_mfma_f32_32x32x16_bf16 a[{k}:{k+15}], v[18:21], v[18:21], 0")
    a(f"v_mfma_f32_32x32x16_bf16 v[{NEG}:{NEG+15}], v[18:21], v[18:21], 0")
    a(f"v_mfma_f32_32x32x16_bf16 v[{NEG+12}:{NEG+27}], v[18:21], v[18:21], 0")
    a("s_nop 7")
    a(f"s_mov_b64 s[{S_FIRST}:{S_FIRST+1}], -1")
    a(f"s_mul_i32 s6, s{P+3}, {8*128*1152}")
    srd(WSRD, WO, "s6", 0, 8*128*1152)
    a(f"s_lshl_b32 s6, s{P+9}, 7")
    a(f"v_lshlrev_b32 v{V_T}, 7, v{V_LANE}")
    a(f"v_mov_b32 v{V_T+1}, 0x7fffff00")
    a(f"v_cmp_gt_u32 vcc, 36, v{V_LANE}")
    a("s_nop 1")
    a(f"v_cndmask_b32 v{V_T}, v{V_T+1}, v{V_T}, vcc")
    a(f"buffer_load_dword v{NEG+28}, v{V_T}, s[{WSRD}:{WSRD+3}], s6 offen")
    a(f"s_add_u32 s6, s6, {36*128}")
    a(f"buffer_load_dword v{NEG+28}, v{V_T}, s[{WSRD}:{WSRD+3}], s6 offen")
    def kaddr():
        ops = [f"v_add_u32 v{V_T+4}, s{S_RD}, v{V_KL}"]
        for k in range(8): ops.append(f"v_xor_b32 v{V_A+k}, {k*32}, v{V_T+4}")
        return ops
    def vaddr():
        ops = [f"v_add_u32 v{V_T+4}, s{S_RD}, v{V_VL}"]
        for T in range(8): ops.append(f"v_xor_b32 v{V_A+T}, {T*32}, v{V_T+4}")
        return ops
    def kreads():
        return [f"ds_read_b64 {vr(KF + (kt*4 + j)*4 + 2*p, 2)}, v{V_A + 2*j + p} offset:{kt*4096}" for kt in range(2) for j in range(4) for p in range(2)]
    def vreads():
        return [f"ds_read_b64_tr_b16 {vr(VF + 4*T + 2*p, 2)}, v{V_A+T} offset:{p*4096}" for T in range(8) for p in range(2)]
    def adv_rd():
        return [f"s_add_u32 s{S_RD}, s{S_RD}, 8192", f"s_cmp_eq_u32 s{S_RD}, s{S_WREND}", f"s_cselect_b32 s{S_RD}, s{S_WR}, s{S_RD}"]
    def refill(kind):
        ins = []
        for it in dma_tile(kind, (S_RD, 0), (S_GOFF, 0), None): ins += it[0] + [it[1]]
        return ins
    def qk_list(jq):
        out = []
        for j in range(4):
            for kt in range(2):
                d = vr(sbuf(jq) + 4*kt, 4)
                cop = vr(NEG + 4*jq, 4) if j == 0 else d
                out.append(f"{MF} {d}, {vr(KF + (kt*4 + j)*4, 4)}, {qf(j, jq)}, {cop}")
        return out
    def pv_list(jq):
        return [f"{MF} {ar(oacc(T, jq), 4)}, {vr(VF + 4*T, 4)}, {vr(pbuf(jq), 4)}, {ar(oacc(T, jq), 4)}" for T in range(8)]
    def softmax(jq):
        Sb = sbuf(jq); Pb = pbuf(jq)
        T = [V_T + i for i in range(4)]
        ops = []
        def e(k): ops.append((f"v_mul_f32 v{T[k%4]}, s{S_SCALE}, v{Sb+k}", 4))
        def x(k): ops.append((f"v_exp_f32 v{T[k%4]}, v{T[k%4]}", 8))
        e(0); e(1); x(0); x(1)
        for j in range(4):
            if 2*j+2 < 8:
                e(2*j+2); e(2*j+3); x(2*j+2); x(2*j+3)
            else: ops.append(("s_nop 0", 4))
            A_, B_ = T[(2*j) % 4], T[(2*j+1) % 4]
            if j == 0: ops.append((f"v_add_f32 v{V_TS}, v{A_}, v{B_}", 4))
            else:
                ops.append((f"v_add_f32 v{V_TS}, v{V_TS}, v{A_}", 4))
                ops.append((f"v_add_f32 v{V_TS}, v{V_TS}, v{B_}", 4))
            ops.append((f"v_cvt_pk_bf16_f32 v{Pb+j}, v{A_}, v{B_}", 4))
        return ops
    a(f"s_mov_b32 s{S_RD}, s{S_WR}")
    a("s_waitcnt vmcnt(34)")
    for o in kaddr(): a(o)
    for o in kreads(): a(o)
    a("s_waitcnt lgkmcnt(0)")
    a(f"s_mov_b32 s{S_GOFF}, 16384")
    for o in refill("V"): a(o)
    for o in adv_rd(): a(o)
    a("s_waitcnt vmcnt(32)")
    for o in vaddr(): a(o)
    for o in vreads(): a(o)
    for m in qk_list(0): a(m)
    a("s_waitcnt lgkmcnt(0)")
    a(f"s_mov_b32 s{S_GOFF}, 24576")
    for o in refill("K"): a(o)
    for o in adv_rd(): a(o)
    a(f"s_mov_b32 s{S_CNT}, 0")
    a("s_nop 7")
    a.label("L_A")
    tr.lds = []; tr.vm = []
    S = Sched(tr, budget=8)
    blocks = []
    for jq in range(7):
        q0 = len(S.M)
        for m in (qk_list(jq+1) if jq < 6 else qk_list(0)): S.mfma(m)
        p0 = len(S.M)
        for m in pv_list(jq): S.mfma(m)
        blocks.append((q0, p0))
    for jq in range(7):
        rdy = -1 if jq == 0 else blocks[jq-1][1] + 2
        due = blocks[jq][1] - 2
        for ins, c_ in softmax(jq): S.fill(ins, ready=rdy, due=due, cost=c_)
        S.fill(f"v_cmp_nge_f32 vcc, s{S_THR}, v{V_TS}", ready=rdy, due=due)
        S.fill(f"s_or_b64 vcc, vcc, s[{S_FIRST}:{S_FIRST+1}]", ready=rdy, due=due)
        S.fill(f"s_cbranch_vccnz L_rare{jq}", ready=rdy, due=due)
        S.fill(f"L_rare{jq}_ret:", ready=rdy, due=due, cost=0)
        S.fill(f"v_add_f32 v{V_L+jq}, v{V_L+jq}, v{V_TS}", ready=rdy, due=due)
    gk = blocks[5][1]
    def kreload():
        tr("s_waitcnt vmcnt(32)")
        for o in kaddr(): tr(o)
        for o in kreads(): tr(o)
    S.at(gk - 1, kreload, cost=100)
    def kdone():
        tr("s_waitcnt lgkmcnt(0)")
        for o in refill("V"): tr(o)
        for o in adv_rd(): tr(o)
    S.at(blocks[6][0] - 1, kdone, cost=100)
    S.emit()
    a("s_waitcnt vmcnt(32)")
    for o in vaddr(): a(o)
    for o in vreads(): a(o)
    a(f"s_add_u32 s{S_GOFF}, s{S_GOFF}, 8192")
    a("s_waitcnt lgkmcnt(0)")
    for o in refill("K"): a(o)
    for o in adv_rd(): a(o)
    a(f"s_mov_b64 s[{S_FIRST}:{S_FIRST+1}], 0")
    a(f"s_add_u32 s{S_CNT}, s{S_CNT}, 1")
    a(f"s_cmp_lt_u32 s{S_CNT}, 16")
    a("s_cbranch_scc1 L_A")
    st()
    V_OW = 9; V_DO = 10; V_OA = 13; V_BA = 14
    u0, u1, u2 = 100, 101, 102
    a(f"v_lshlrev_b32 v{V_OW}, 4, v{V_LANE}")
    a(f"v_add_u32 v{V_BA}, 0, v{V_OW}")
    a(f"v_add_u32 v{V_OW}, s{S_WR}, v{V_OW}")
    a("s_mov_b32 s6, 0x2aaaaaab")
    for i in range(3):
        a(f"v_add_u32 v{u0}, {64*i}, v{V_LANE}")
        a(f"v_mul_hi_u32 v{u1}, v{u0}, s6")
        a(f"v_mul_u32_u24 v{u2}, 6, v{u1}")
        a(f"v_sub_u32 v{u2}, v{u0}, v{u2}")
        a(f"v_mul_u32_u24 v{u1}, 1152, v{u1}")
        a(f"v_lshl_add_u32 v{V_DO+i}, v{u2}, 4, v{u1}")
    a(f"v_lshrrev_b32 v{u0}, 4, v{V_LANE}")
    a(f"v_bfe_u32 v{u1}, v{V_LANE}, 2, 2")
    a(f"v_lshl_add_u32 v{u0}, v{u0}, 2, v{u1}")
    a(f"v_mul_u32_u24 v{u0}, 96, v{u0}")
    a(f"v_and_b32 v{u1}, 3, v{V_LANE}")
    a(f"v_lshl_add_u32 v{u0}, v{u1}, 3, v{u0}")
    a(f"s_add_u32 s6, s{S_WR}, 28672")
    a(f"v_add_u32 v{V_OA}, s6, v{u0}")
    a(f"s_mul_i32 s6, s{P+6}, {512*1152}")
    a(f"s_mul_i32 s7, s{S_WAVE}, 288")
    a(f"s_add_u32 s6, s6, s7")
    a(f"s_sub_u32 s7, {512*1152}, s7")
    srd(SRD_WO, WO, "s6", 0, "s7")
    a(f"s_mov_b32 s{S_OO}, 0")
    a("s_waitcnt vmcnt(0)")
    def dma_wo(pr):
        kap, gam = divmod(pr, 3)
        return [([f"s_add_u32 m0, s{S_WR}, {28672 + (pr % 4)*3072 + i*1024}"] + ([f"s_add_u32 s{S_T}, s{S_OO}, {kap*32*1152 + gam*96}"] if i == 0 else ["s_nop 0"]),
                 f"buffer_load_dwordx4 v{V_DO+i}, s[{SRD_WO}:{SRD_WO+3}], s{S_T} offen lds", ("wo", pr)) for i in range(3)]
    tr.vm = []
    for pi in range(4):
        for it in dma_wo(pi): emit_item(it)
    for jq in range(7):
        for o in xlane("v_add_f32", V_L + jq, V_T): a(o)
        a(f"v_rcp_f32 v{V_L+jq}, v{V_L+jq}")
        for jp in range(4):
            b = 32 + ((jq*4 + jp) % 4)*16
            for k in range(4):
                a(f"v_accvgpr_read_b32 v{b+k}, a{oacc(2*jp, jq)+k}")
                a(f"v_accvgpr_read_b32 v{b+4+k}, a{oacc(2*jp+1, jq)+k}")
            for k in range(8): a(f"v_mul_f32 v{b+k}, v{b+k}, v{V_L+jq}")
            for k in range(4): a(f"v_cvt_pk_bf16_f32 v{b+8+k}, v{b+2*k}, v{b+2*k+1}")
            a(f"ds_write_b128 v{V_OW}, {vr(b+8, 4)} offset:{(jq*4 + jp)*1024}")
    a(f"s_lshl_b32 s6, s{P+2}, 4")
    a(f"s_add_u32 s6, s6, s{P+4}")
    a(f"s_lshl_b32 s6, s6, 3")
    a(f"s_add_u32 s6, s6, s{P+6}")
    a(f"s_lshl_b32 s6, s6, 2")
    a(f"s_add_u32 s6, s6, s{S_WAVE}")
    a(f"s_lshl_b32 s6, s6, 15")
    srd(SRD_WS, WS, "s6", 0, 32768)
    a("s_waitcnt lgkmcnt(0)")
    a("s_barrier")
    st()
    BF = [32, 60]; AB = 88; NBO = 4
    def oa(ct, jq): return (ct*7 + jq)*4
    def bread(kl, jq):
        reg = V_BA if kl < 4 else V_BA + 1
        tr.ds(f"ds_read_b128 {vr(BF[kl%2] + 4*jq, 4)}, v{reg} offset:{(jq*4 + kl % 4)*1024}", ("B", kl))
    def aread(tile, k):
        pi, cl = divmod(tile, 3)
        tr.ds(f"ds_read_b64_tr_b16 {vr(AB + 4*(tile % NBO) + 2*k, 2)}, v{V_OA} offset:{(pi % 4)*3072 + cl*32 + k*1536}", ("A", tile))
    vm_entry_o = [("wo", p) for p in range(4) for _ in range(3)]
    def out_body(first, last, extra_fill=None):
        tr.lds = [("A", t_) for t_ in range(1, AH) for _ in range(2)]
        tr.vm = list(vm_entry_o)
        S = Sched(tr)
        NT = 36
        for tile in range(NT):
            kl, ct = divmod(tile, 9)
            for jq in range(7):
                cop = "0" if (first and kl == 0) else ar(oa(ct, jq), 4)
                S.mfma(f"{MF} {ar(oa(ct, jq), 4)}, {vr(AB + 4*(tile % NBO), 4)}, {vr(BF[kl%2] + 4*jq, 4)}, {cop}")
        for tile in range(NT):
            kl, ct = divmod(tile, 9)
            g0 = tile*7
            nt_ = tile + 1
            if not (last and nt_ == NT):
                need = [("A", nt_)] + ([("B", nt_ // 9)] if nt_ % 9 == 0 else [])
                S.at(g0 + 6, (lambda need=need: tr.wait_lds(*need)))
            nx = tile + AH
            if not (last and nx >= NT):
                if nx % 3 == 0: S.at(g0, (lambda nx=nx: tr.wait_vm(("wo", nx // 3))))
                S.at(g0 + 1, (lambda nx=nx: aread(nx, 0)))
                S.at(g0 + 2, (lambda nx=nx: aread(nx, 1)))
            if tile % 3 == 2:
                pi = tile // 3
                if not (last and pi + 4 >= 12):
                    for k, it in enumerate(dma_wo(pi + 4)):
                        S.at(g0 + 3 + k, (lambda it=it: emit_item(it)), cost=12)
            if ct == 4 and not (last and kl == 3):
                for jq in range(7):
                    S.at(g0 + 3 + (jq % 4) + (jq // 4)*7, (lambda kl=kl, jq=jq: bread(kl + 1, jq)))
        if extra_fill: extra_fill(S)
        S.emit()
    a(f"v_add_u32 v{V_BA+1}, {WR}, v{V_BA}")
    tr.lds = []
    for jq in range(7): bread(0, jq)
    a("s_waitcnt vmcnt(9)")
    for tile in range(AH):
        aread(tile, 0); aread(tile, 1)
    a("s_waitcnt lgkmcnt(0)")
    def adv_head():
        a(f"s_add_u32 s{S_OO}, s{S_OO}, {128*1152}")
        a(f"v_add_u32 v{V_BA}, {WR}, v{V_BA}")
        a(f"v_add_u32 v{V_BA+1}, {WR}, v{V_BA+1}")
    out_body(True, False)
    adv_head()
    a(f"s_mov_b32 s{S_CNT}, 0")
    a.label("L_O")
    out_body(False, False)
    adv_head()
    a(f"s_add_u32 s{S_CNT}, s{S_CNT}, 1")
    a(f"s_cmp_lt_u32 s{S_CNT}, 2")
    a("s_cbranch_scc1 L_O")
    a(f"v_lshlrev_b32 v1, 4, v{V_LANE}")
    done_pairs = [0]
    def store_pair(i):
        b = 104 + (i % 4)*16
        ops = []
        nt_ = 2 if i < 31 else 1
        for k in range(4*nt_): ops.append(f"v_accvgpr_read_b32 v{b+k}, a{8*i+k}")
        for k in range(2*nt_): ops.append(f"v_cvt_pk_bf16_f32 v{b+8+k}, v{b+2*k}, v{b+2*k+1}")
        if nt_ == 1:
            ops.append(f"v_mov_b32 v{b+10}, 0"); ops.append(f"v_mov_b32 v{b+11}, 0")
        ops.append(f"s_mov_b32 s{S_T2}, {(i // 4)*4096}")
        ops.append(f"buffer_store_dwordx4 {vr(b+8, 4)}, v1, s[{SRD_WS}:{SRD_WS+3}], s{S_T2} offen offset:{(i % 4)*1024}{C.st_flags}")
        return ops
    tailst = []
    def fill_stores(S):
        for i in range(32):
            tl = min(2*i + 1, 62)
            ct = tl // 7
            rdy = (27 + ct)*7 + (tl % 7) + 3
            for o in store_pair(i):
                if rdy < len(S.M) - 1: S.fill(o, ready=rdy)
                else: tailst.append(o)
    out_body(False, True, fill_stores)
    st()
    a("s_nop 7"); a("s_nop 7")
    for o in tailst: a(o)
    if C.stamp:
        st()
        a("s_waitcnt vmcnt(0)")
        st()
        a("s_memrealtime s[68:69]")
        a("s_waitcnt lgkmcnt(0)")
        a(f"v_writelane_b32 v{V_STAMP}, s68, 63")
        a(f"v_writelane_b32 v{V_STAMP}, s70, 62")
        for k in range(5): a(f"v_writelane_b32 v{V_STAMP}, s{88+2*k}, {48+k}")
        a(f"s_mov_b32 s{SRD_WS}, s{WS}")
        a(f"s_and_b32 s{SRD_WS+1}, s{WS+1}, 0xffff")
        a(f"s_mov_b32 s{SRD_WS+2}, 0x4000000")
        a(f"s_lshl_b32 s{S_T}, s2, 2")
        a(f"s_add_u32 s{S_T}, s{S_T}, s{S_WAVE}")
        a(f"s_lshl_b32 s{S_T}, s{S_T}, 8")
        a(f"s_add_u32 s{S_T}, s{S_T}, {40<<20}")
        a(f"v_lshlrev_b32 v1, 2, v{V_LANE}")
        a(f"buffer_store_dword v{V_STAMP}, v1, s[{SRD_WS}:{SRD_WS+3}], s{S_T} offen")
    a("s_endpgm")
    for jq in range(7):
        Sb = sbuf(jq)
        a.label(f"L_rare{jq}")
        a("s_nop 7")
        d, tm = V_T, V_T + 1
        a(f"v_max3_f32 v{d}, v{Sb}, v{Sb+1}, v{Sb+2}")
        a(f"v_max3_f32 v{tm}, v{Sb+3}, v{Sb+4}, v{Sb+5}")
        a(f"v_max3_f32 v{d}, v{d}, v{Sb+6}, v{Sb+7}")
        a(f"v_max_f32 v{d}, v{d}, v{tm}")
        for o in xlane("v_max_f32", d, tm): a(o)
        a(f"s_cmp_eq_u32 s{S_CNT}, 0")
        a(f"s_cbranch_scc1 L_rare{jq}_first")
        a(f"v_max_f32 v{d}, 0, v{d}")
        a(f"v_mul_f32 v{tm}, s{S_NSC}, v{d}")
        a(f"v_exp_f32 v{tm}, v{tm}")
        a("s_nop 0")
        for T in range(8):
            for k in range(4):
                a(f"v_accvgpr_read_b32 v{V_T+2}, a{oacc(T, jq)+k}")
                a(f"v_mul_f32 v{V_T+2}, v{V_T+2}, v{tm}")
                a(f"v_accvgpr_write_b32 a{oacc(T, jq)+k}, v{V_T+2}")
        a(f"v_mul_f32 v{V_L+jq}, v{V_L+jq}, v{tm}")
        a.label(f"L_rare{jq}_first")
        for k in range(8): a(f"v_sub_f32 v{Sb+k}, v{Sb+k}, v{d}")
        for k in range(4): a(f"v_sub_f32 v{NEG+4*jq+k}, v{NEG+4*jq+k}, v{d}")
        for ins, c_ in softmax(jq): a(ins)
        a("s_nop 1")
        a(f"s_branch L_rare{jq}_ret")
    a.label("L_exit")
    a("s_endpgm")
    a.label("L_code_end")
    return a.text()

def generate(path):
    body = gen_main()
    red = gen_reduce()
    ll = [("attn_main_kernel", 256, 256, 163840), ("attn_reduce_kernel", 1024, 256, 0)]
    if C.only == "main": ll = ll[:1]
    txt = make_file(ll, [("attn_main_kernel", body, 512, 100, 256), ("attn_reduce_kernel", red, 64, 40, 64)])
    open(path, "w").write(txt)

if __name__ == "__main__":
    out = sys.argv[1] if len(sys.argv) > 1 else "w3.s"
    for kv in sys.argv[2:]:
        k, v = kv.split("=")
        setattr(C, k, eval(v))
    generate(out)
```

```python
import sys, struct, math
from asmlib import *
from gen_w import Tracker, Sched, xlane, vr, ar, f2u, MF, gen_reduce

class Cfg:
    nt_kv = True
    THR = 0x47800000
    stamp = False
    st_flags = ""
    only = None
    AH = 2
    nobar = False
    prescale = True
    outg = False
    NS = 4
    NS2 = None
    xcc = False
    fst = " sc0 sc1"
    fld = " sc0 sc1"
    fuse = False
    kvgap = 10
    codepf = False
    qnt = ""
    nodma = False
    noxread = False
C = Cfg()

WR = 40960
S_WAVE = 3
SRD_X = 8; SRD_WQ = 12; SRD_K = 16; SRD_V = 20; SRD_WO = 24; SRD_WS = 28
S_WR = 32; S_T = 33; S_T2 = 34; S_CNT = 35
S_RD = 36; S_GOFF = 37
S_THR = 38; S_SCALE = 39; S_NSC = 40
S_QO = 41
S_FIRST = 42
S_WREND = 44
S_XO = 45
S_XLDS = 46
S_OO = 47
S_P = 48
WSRD = 84
S_XTOG = 60
V_LANE = 0
V_DK = 1; V_DV = 5; V_KL = 7; V_VL = 8
V_A = 9; V_T = 17; V_TS = 23; V_L = 24; V_STAMP = 31

def gen_main():
    a = Asm()
    tr = Tracker(a)
    P = S_P
    nt = " nt" if C.nt_kv else ""
    stamp_i = [0]
    def st():
        if C.stamp:
            a("s_memtime s[64:65]")
            a("s_memrealtime s[66:67]")
            a("s_waitcnt lgkmcnt(0)")
            a(f"v_writelane_b32 v{V_STAMP}, s64, {stamp_i[0]}")
            a(f"v_writelane_b32 v{V_STAMP}, s66, {32 + stamp_i[0]}")
            tr.lds = []
        stamp_i[0] += 1
    X, K, V, WQ, WO, WS = 72, 74, 76, 78, 80, 82
    a("s_cmp_ge_u32 s2, 256")
    a("s_cbranch_scc1 L_exit")
    if C.codepf:
        a("s_getpc_b64 s[86:87]")
        a.label("L_pc")
        a("v_lshrrev_b32 v1, 6, v0")
        a("s_lshr_b32 s6, s2, 3")
        a("v_lshl_add_u32 v1, s6, 2, v1")
        a("v_mul_u32_u24 v2, 43691, v1")
        a("v_lshrrev_b32 v2, 18, v2")
        a("v_mul_u32_u24 v2, 6, v2")
        a("v_sub_u32 v1, v1, v2")
        a("v_lshlrev_b32 v1, 13, v1")
        a("v_and_b32 v2, 63, v0")
        a("v_lshl_add_u32 v1, v2, 7, v1")
        a("v_min_u32 v1, (L_code_end - L_pc - 4), v1")
        a("v_and_b32 v1, -4, v1")
        a("global_load_dword v23, v1, s[86:87]")
    a(f"s_and_b32 s{P+2}, s2, 1")
    a(f"s_mul_i32 s{P+7}, s{P+2}, 40")
    a(f"s_add_u32 s4, s0, s{P+7}")
    a("s_addc_u32 s5, s1, 0")
    a(f"s_load_dwordx2 s[{X}:{X+1}], s[4:5], 0")
    a(f"s_load_dwordx2 s[{WQ}:{WQ+1}], s[4:5], 24")
    a(f"s_load_dwordx2 s[{K}:{K+1}], s[4:5], 8")
    a(f"s_load_dwordx2 s[{V}:{V+1}], s[4:5], 16")
    a(f"s_load_dwordx2 s[{WO}:{WO+1}], s[4:5], 32")
    a(f"s_load_dwordx2 s[{WS}:{WS+1}], s[0:1], 96")
    if C.stamp: a("s_memrealtime s[70:71]")
    a(f"s_and_b32 s{P}, s2, 7")
    a(f"s_lshr_b32 s{P+1}, s2, 3")
    a(f"s_and_b32 s{P+5}, s{P+1}, 1")
    a(f"s_lshr_b32 s{P+3}, s{P}, 1")
    a(f"s_lshr_b32 s{P+4}, s{P+1}, 1")
    a(f"s_lshl_b32 s{P+6}, s{P+3}, 1")
    a(f"s_add_u32 s{P+6}, s{P+6}, s{P+5}")
    a("v_lshrrev_b32 v1, 6, v0")
    a(f"v_and_b32 v{V_LANE}, 63, v0")
    a(f"v_readfirstlane_b32 s{S_WAVE}, v1")
    L = V_LANE
    t0, t1, t2, t3, n, g, r, cc = 232, 233, 234, 235, 236, 237, 238, 239
    V_DQ = 9; V_DX = 13; V_XA = 14; V_QA = 15
    a(f"v_lshrrev_b32 v{t0}, 3, v{L}")
    a(f"v_and_b32 v{t1}, 7, v{L}")
    a(f"v_bfe_u32 v{t3}, v{L}, 4, 1")
    a(f"v_lshlrev_b32 v{t3}, 1, v{t3}")
    a(f"v_xor_b32 v{t3}, v{t3}, v{t1}")
    a(f"v_lshlrev_b32 v{t3}, 4, v{t3}")
    a(f"v_lshlrev_b32 v{t2}, 13, v{t0}")
    a(f"v_add_u32 v{V_DQ}, v{t2}, v{t3}")
    a(f"v_xor_b32 v{V_DQ+1}, 64, v{V_DQ}")
    a(f"v_add_u32 v{V_DQ+1}, {65536-1024}, v{V_DQ+1}")
    a(f"v_add_u32 v{V_DQ+2}, {2*(65536-1024)}, v{V_DQ}")
    a(f"v_add_u32 v{V_DQ+3}, {2*(65536-1024)}, v{V_DQ+1}")
    a(f"v_lshrrev_b32 v{g}, 4, v{L}")
    a(f"v_and_b32 v{cc}, 3, v{L}")
    a(f"v_lshrrev_b32 v{t0}, 2, v{L}")
    a(f"v_sub_u32 v{t1}, 0, v{g}")
    a(f"v_and_b32 v{t1}, 3, v{t1}")
    a(f"v_xor_b32 v{t1}, v{t1}, v{cc}")
    a(f"v_lshlrev_b32 v{t1}, 4, v{t1}")
    a(f"v_mul_u32_u24 v{t2}, 1152, v{t0}")
    a(f"v_add_u32 v{V_DX}, v{t2}, v{t1}")
    a(f"s_mul_i32 s{S_WR}, s{S_WAVE}, {WR}")
    a(f"s_mul_i32 s{S_XO}, s{S_WAVE}, {16*1152}")
    a(f"s_lshl_b32 s{S_XLDS}, s{S_WAVE}, 10")
    a(f"s_lshl_b32 s6, s{P+6}, 2")
    a(f"s_add_u32 s{P+8}, s6, s{S_WAVE}")
    a(f"s_mov_b32 s{S_QO}, 0")
    a("s_waitcnt lgkmcnt(0)")
    def srd(dst, ptr, off_lo, off_hi, size):
        a(f"s_add_u32 s{dst}, s{ptr}, {off_lo}")
        a(f"s_addc_u32 s{dst+1}, s{ptr+1}, {off_hi}")
        a(f"s_and_b32 s{dst+1}, s{dst+1}, 0xffff")
        a(f"s_mov_b32 s{dst+2}, {size}")
        a(f"s_mov_b32 s{dst+3}, 0x20000")
    if C.stamp: a("s_memrealtime s[88:89]")
    a(f"s_lshl_b32 s6, s{P+8}, 8")
    a(f"s_sub_u32 s7, {576*8192}, s6")
    srd(SRD_WQ, WQ, "s6", 0, "s7")
    a(f"s_mul_i32 s6, s{P+4}, 129024")
    srd(SRD_X, X, "s6", 0, 129024)
    XSL = [32768, WR + 32768]
    def dma_wq(ksr, h):
        return [(([f"s_add_u32 m0, s{S_WR}, {16384 + (ksr%2)*8192 + h*4096}",
                   f"s_add_u32 s{S_T}, s{S_QO}, {32*ksr*8192 + h*128}"] if p == 0 else []),
                 f"buffer_load_dwordx4 v{V_DQ + p}, s[{SRD_WQ}:{SRD_WQ+3}], s{S_T} offen offset:{p*1024}{C.qnt} lds", ("wq", ksr, h)) for p in range(4)]
    def dma_x(pr, par=0):
        return [([f"s_add_u32 m0, s{S_XLDS}, {32768 + par*2*WR + sub*WR + k*4096}",
                  f"s_add_u32 s{S_T}, s{S_XO}, {k*64*1152 + (2*pr + sub)*64}"],
                 f"buffer_load_dwordx4 v{V_DX}, s[{SRD_X}:{SRD_X+3}], s{S_T} offen{C.qnt} lds", ("x", pr)) for sub in range(2) for k in range(2)]
    def emit_item(it):
        for s_ in it[0]: tr(s_)
        tr.vmem(it[1], it[2])
    for it in dma_wq(0, 0) + dma_x(0) + dma_wq(0, 1) + dma_wq(1, 0) + dma_wq(1, 1) + dma_x(1, 1): emit_item(it)
    a(f"s_mov_b32 s{S_XTOG}, {2*WR}")
    if C.stamp: a("s_memrealtime s[90:91]")
    a(f"s_lshl_b32 s6, s{P+4}, 5")
    a(f"s_add_u32 s6, s6, s{P+8}")
    a(f"s_lshl_b32 s6, s6, 17")
    srd(SRD_K, K, "s6", 0, 131072)
    srd(SRD_V, V, "s6", 0, 131072)
    a(f"s_lshl_b32 s6, s{P+3}, 11")
    a(f"s_sub_u32 s7, {576*8192}, s6")
    srd(WSRD, WQ, "s6", 0, "s7")
    a(f"s_lshl_b32 s6, s{P+1}, 2")
    a(f"s_add_u32 s6, s6, s{S_WAVE}")
    a(f"s_mul_i32 s{P+9}, s6, 72")
    a(f"v_mov_b32 v{t1}, 0x7fffff00")
    a(f"v_cmp_gt_u32 vcc, 36, v{L}")
    for k in range(2):
        a(f"v_add_u32 v{t0}, s{P+9}, v{L}")
        if k: a(f"v_add_u32 v{t0}, 36, v{t0}")
        a(f"v_lshrrev_b32 v{t2}, 4, v{t0}")
        a(f"v_lshlrev_b32 v{t2}, 13, v{t2}")
        a(f"v_and_b32 v{t0}, 15, v{t0}")
        a(f"v_lshl_add_u32 v{t0}, v{t0}, 7, v{t2}")
        a(f"v_cndmask_b32 v{t0}, v{t1}, v{t0}, vcc")
        tr.vmem(f"buffer_load_dword v{V_TS}, v{t0}, s[{WSRD}:{WSRD+3}], 0 offen{C.qnt}", "warm")
    if C.stamp: a("s_memrealtime s[92:93]")
    if C.stamp: a(f"v_mov_b32 v{V_STAMP}, 0")
    a(f"v_and_b32 v{n}, 15, v{L}")
    a(f"v_bfe_u32 v{r}, v{L}, 2, 2")
    a(f"s_mov_b32 s{S_THR}, {C.THR:#x}")
    sc = math.log2(math.e) / math.sqrt(128.0)
    a(f"s_mov_b32 s{S_SCALE}, {f2u(sc):#x}")
    a(f"s_mov_b32 s{S_NSC}, {f2u(-sc):#x}")
    a(f"v_lshrrev_b32 v{t0}, 1, v{r}")
    a(f"v_and_b32 v{t1}, 1, v{g}")
    a(f"v_lshl_or_b32 v{t0}, v{t1}, 1, v{t0}")
    a(f"v_lshlrev_b32 v{t0}, 1, v{t0}")
    a(f"v_lshrrev_b32 v{t1}, 1, v{cc}")
    a(f"v_xor_b32 v{t0}, v{t0}, v{t1}")
    a(f"v_lshlrev_b32 v{t0}, 4, v{t0}")
    a(f"v_lshl_add_u32 v{t1}, v{g}, 3, v{r}")
    a(f"v_lshl_add_u32 v{t0}, v{t1}, 7, v{t0}")
    a(f"v_and_b32 v{t1}, 1, v{cc}")
    a(f"v_lshl_add_u32 v{t0}, v{t1}, 3, v{t0}")
    a(f"s_add_u32 s6, s{S_WR}, 16384")
    a(f"v_add_u32 v{t0}, s6, v{t0}")
    for Tl in range(4): a(f"v_xor_b32 v{V_QA+Tl}, {Tl*32}, v{t0}")
    a(f"v_lshrrev_b32 v{t0}, 2, v{n}")
    a(f"v_sub_u32 v{t0}, 0, v{t0}")
    a(f"v_and_b32 v{t0}, 3, v{t0}")
    a(f"v_xor_b32 v{t0}, v{t0}, v{g}")
    a(f"v_lshlrev_b32 v{t0}, 4, v{t0}")
    a(f"v_lshl_add_u32 v{t0}, v{n}, 6, v{t0}")
    a(f"v_add_u32 v{V_XA}, 32768, v{t0}")
    a(f"v_and_b32 v{t1}, 15, v{L}")
    a(f"v_lshlrev_b32 v{t2}, 8, v{g}")
    for q in range(4):
        a(f"v_add_u32 v{t3}, {4*q}, v{g}")
        a(f"v_xor_b32 v{t3}, v{t3}, v{t1}")
        a(f"v_lshl_add_u32 v{V_DK+q}, v{t3}, 4, v{t2}")
    a(f"v_lshlrev_b32 v{t3}, 1, v{g}")
    a(f"v_xor_b32 v{t3}, v{t3}, v{t1}")
    a(f"v_lshl_add_u32 v{V_DV}, v{t3}, 4, v{t2}")
    a(f"v_xor_b32 v{V_DV+1}, 128, v{V_DV}")
    a(f"v_lshrrev_b32 v{t0}, 1, v{g}")
    a(f"v_xor_b32 v{t0}, v{t0}, v{n}")
    a(f"v_lshlrev_b32 v{t0}, 4, v{t0}")
    a(f"v_lshl_add_u32 v{t0}, v{n}, 8, v{t0}")
    a(f"v_and_b32 v{t1}, 1, v{g}")
    a(f"v_lshl_add_u32 v{V_KL}, v{t1}, 3, v{t0}")
    a(f"v_lshl_add_u32 v{t0}, v{g}, 2, v{r}")
    a(f"v_and_b32 v{t1}, 7, v{t0}")
    a(f"v_lshlrev_b32 v{t1}, 1, v{t1}")
    a(f"v_lshrrev_b32 v{t2}, 1, v{cc}")
    a(f"v_xor_b32 v{t1}, v{t1}, v{t2}")
    a(f"v_lshlrev_b32 v{t1}, 4, v{t1}")
    a(f"v_lshl_add_u32 v{t0}, v{t0}, 8, v{t1}")
    a(f"v_and_b32 v{t1}, 1, v{cc}")
    a(f"v_lshl_add_u32 v{V_VL}, v{t1}, 3, v{t0}")
    def dma_tile(kind, lds_expr, goff_expr, tag):
        items = []
        for h in range(2):
            for q in range(4):
                pre = []
                if q == 0:
                    pre.append(f"s_add_u32 m0, s{lds_expr[0]}, {lds_expr[1] + h*4096}")
                    if goff_expr[0] is None: pre.append(f"s_mov_b32 s{S_T}, {goff_expr[1] + h*4096}")
                    else: pre.append(f"s_add_u32 s{S_T}, s{goff_expr[0]}, {goff_expr[1] + h*4096}")
                if kind == "K":
                    ins = f"buffer_load_dwordx4 v{V_DK+q}, s[{SRD_K}:{SRD_K+3}], s{S_T} offen offset:{q*1024}{nt} lds"
                else:
                    ins = f"buffer_load_dwordx4 v{V_DV + (q & 1)}, s[{SRD_V}:{SRD_V+3}], s{S_T} offen offset:{q*1024}{nt} lds"
                items.append((pre, ins, tag))
        return items
    if C.stamp: a("s_memrealtime s[94:95]")
    QACC = 32
    def qacc(T, jq): return QACC + (T*7 + jq)*4
    XF = [0, 28]; WB = 56; NB = 4; AH = C.AH
    for k in range(4): a(f"v_mov_b32 v{252+k}, 0")
    for jq in range(7): a(f"v_mov_b32 v{V_L+jq}, 0")
    a("s_nop 1")
    for k in range(80, 224, 16): a(f"v_mfma_f32_32x32x16_bf16 a[{k}:{k+15}], v[252:255], v[252:255], 0")
    st()
    def xread(ksr, jq):
        tr.ds(f"ds_read_b128 {ar(XF[ksr%2] + 4*jq, 4)}, v{V_XA} offset:{(ksr % 2)*WR + jq*1024}", ("X", ksr))
    def wread(tile, k):
        ksr, T = divmod(tile, 8)
        off = (ksr % 2)*8192 + (T // 4)*4096 + k*512
        tr.ds(f"ds_read_b64_tr_b16 {ar(WB + 4*(tile % NB) + 2*k, 2)}, v{V_QA + T % 4} offset:{off}", ("A", tile))
    tr.wait_vm(("x", 0), ("wq", 0, 0))
    a("s_barrier")
    if C.stamp: a("s_memrealtime s[96:97]")
    for jq in range(7): xread(0, jq)
    for tile in range(AH):
        wread(tile, 0); wread(tile, 1)
    a("s_waitcnt lgkmcnt(0)")
    a(f"s_mov_b32 s{S_CNT}, 0")
    vm_entry = [("wq", 0, 0)]*4 + [("wq", 0, 1)]*4 + [("wq", 1, 0)]*4 + [("x", 1)]*4 + [("wq", 1, 1)]*4
    def qf(j, jq):
        f = j*7 + jq
        return vr(32 + 4*f, 4) if f < 20 else ar(224 + 4*(f - 20), 4)
    def q_body(last, first=False):
        tr.lds = [("A", t_) for t_ in range(1, AH) for _ in range(2)]
        if not first: tr.vm = list(vm_entry)
        S = Sched(tr)
        NT = 16
        order = list(range(16))
        for tile in range(NT):
            ksr, T = divmod(tile, 8)
            for jq in range(7):
                cop = "0" if (first and ksr == 0) else vr(qacc(T, jq), 4)
                S.mfma(f"{MF} {vr(qacc(T, jq), 4)}, {ar(WB + 4*(tile % NB), 4)}, {ar(XF[ksr%2] + 4*jq, 4)}, {cop}")
        for tile in range(NT):
            ksr, T = divmod(tile, 8)
            g0 = tile*7
            nxt_tile = tile + 1
            nks, nT = divmod(nxt_tile, 8)
            if not (last and nxt_tile == 16):
                need = [("A", nxt_tile)] + ([("X", nks)] if nT == 0 else [])
                S.at(g0 + 6, (lambda need=need: tr.wait_lds(*need)))
            nx = tile + AH
            if not (last and nx >= 16):
                nks2, nT2 = divmod(nx, 8)
                if nT2 % 4 == 0:
                    S.at(g0, (lambda nks2=nks2, nT2=nT2: tr.wait_vm(("wq", nks2, nT2 // 4))))
                S.at(g0 + 1, (lambda nx=nx: wread(nx, 0)))
                S.at(g0 + 2, (lambda nx=nx: wread(nx, 1)))
            if T % 4 == 3 and not last:
                its = dma_wq(ksr + 2, T // 4)
                gaps = [g0 + 3, g0 + 4, g0 + 5, g0 + 6] if True else None
                for k, it in enumerate(its):
                    if not (C.nodma and not first): S.at(gaps[k], (lambda it=it: emit_item(it)), cost=(8 if k == 0 else 4))
            if T == 4 and ksr == 0:
                for jq in range(7):
                    S.at(g0 + 3 + (jq % 3) + (jq // 3)*7, (lambda jq=jq: xread(1, jq)))
            if T == 4 and ksr == 1 and not last:
                def midbar():
                    tr.wait_vm(("x", 1))
                    if not C.nobar: tr("s_barrier")
                    tr(f"v_add_u32 v{V_XA}, s{S_XTOG}, v{V_XA}")
                S.at(g0 + 3, midbar, cost=12)
                for k, it in enumerate(dma_x(2)):
                    S.at(g0 + 5 + 7*(k % 3) + (k // 3), (lambda it=it: emit_item(it)), cost=12)
                for jq in range(7):
                    S.at(g0 + 7 + 3 + (jq % 3) + (jq // 3)*7, (lambda jq=jq: xread(2, jq)))
        tail = []
        if last:
            kv = dma_tile("K", (S_WR, 0), (None, 0), ("kv", 0)) + dma_tile("V", (S_WR, 8192), (None, 0), ("kv", 1))
            for k, it in enumerate(kv):
                S.at(C.kvgap*7 + 3 + 2*k, (lambda it=it: emit_item(it)), cost=8)
            for j in range(4):
                rdy = (8 + 2*j + 1)*7 + 6 + 3
                for jq in range(7):
                    f = j*7 + jq
                    A0, A1 = qacc(2*j, jq), qacc(2*j+1, jq)
                    if f < 20:
                        d = 32 + 4*f
                        ops = [f"v_cvt_pk_bf16_f32 v{d}, v{A0}, v{A0+1}", f"v_cvt_pk_bf16_f32 v{d+1}, v{A0+2}, v{A0+3}",
                               f"v_cvt_pk_bf16_f32 v{d+2}, v{A1}, v{A1+1}", f"v_cvt_pk_bf16_f32 v{d+3}, v{A1+2}, v{A1+3}"]
                    else:
                        d = 224 + 4*(f - 20)
                        ops = [f"v_cvt_pk_bf16_f32 v{V_T+k}, v{x_}, v{y_}" for k, (x_, y_) in enumerate(((A0, A0+1), (A0+2, A0+3), (A1, A1+1), (A1+2, A1+3)))]
                        ops += [f"v_accvgpr_write_b32 a{d+k}, v{V_T+k}" for k in range(4)]
                    if C.prescale:
                        ops = [f"v_mul_f32 v{x_}, s{S_SCALE}, v{x_}" for x_ in (A0, A0+1, A0+2, A0+3, A1, A1+1, A1+2, A1+3)] + ops
                    for o in ops:
                        if rdy < len(S.M): S.fill(o, ready=rdy)
                        else: tail.append(o)
        S.emit()
        return tail
    def q_adv():
        a(f"s_add_u32 s{S_QO}, s{S_QO}, {64*8192}")
        a(f"s_add_u32 s{S_XO}, s{S_XO}, 128")
        a(f"s_add_u32 s{S_XLDS}, s{S_XLDS}, s{S_XTOG}")
        a(f"s_sub_u32 s{S_XTOG}, 0, s{S_XTOG}")
    q_body(False, True)
    q_adv()
    a.label("L_Q")
    q_body(False)
    if C.stamp:
        a("s_memtime s[64:65]")
        a("s_waitcnt lgkmcnt(0)")
        a(f"s_add_u32 s66, s{S_CNT}, 8")
        a(f"v_mov_b32 v{V_TS}, s64")
        a(f"v_cmp_ne_u32 vcc, s66, v{V_LANE}")
        a("s_nop 1")
        a(f"v_cndmask_b32 v{V_STAMP}, v{V_TS}, v{V_STAMP}, vcc")
    q_adv()
    a(f"s_add_u32 s{S_CNT}, s{S_CNT}, 1")
    a(f"s_cmp_lt_u32 s{S_CNT}, 7")
    a("s_cbranch_scc1 L_Q")
    tail = q_body(True)
    a("s_waitcnt lgkmcnt(0)")
    a("s_barrier")
    for o in tail: a(o)
    st()
    KF = 112; VF = 144; SB = 176; PB = 200; NEG = 212
    def sbuf(jq): return SB + 8*(0 if jq == 0 else 1 + (jq - 1) % 2)
    def pbuf(jq): return PB + 4*(0 if jq == 0 else 1 + (jq - 1) % 2)
    def oacc(T, jq): return (T*7 + jq)*4
    for k in range(4): a(f"v_mov_b32 v{18+k}, 0")
    a("s_nop 1")
    for k in range(0, 80, 16): a(f"v_mfma_f32_32x32x16_bf16 a[{k}:{k+15}], v[18:21], v[18:21], 0")
    a(f"v_mfma_f32_32x32x16_bf16 v[{NEG}:{NEG+15}], v[18:21], v[18:21], 0")
    a(f"v_mfma_f32_32x32x16_bf16 v[{NEG+12}:{NEG+27}], v[18:21], v[18:21], 0")
    a("s_nop 7")
    a(f"s_mov_b64 s[{S_FIRST}:{S_FIRST+1}], -1")
    a(f"s_mul_i32 s6, s{P+3}, {8*128*1152}")
    srd(WSRD, WO, "s6", 0, 8*128*1152)
    a(f"s_lshl_b32 s6, s{P+9}, 7")
    a(f"v_lshlrev_b32 v{V_T}, 7, v{V_LANE}")
    a(f"v_mov_b32 v{V_T+1}, 0x7fffff00")
    a(f"v_cmp_gt_u32 vcc, 36, v{V_LANE}")
    a("s_nop 1")
    a(f"v_cndmask_b32 v{V_T}, v{V_T+1}, v{V_T}, vcc")
    a(f"buffer_load_dword v{NEG+28}, v{V_T}, s[{WSRD}:{WSRD+3}], s6 offen")
    a(f"s_add_u32 s6, s6, {36*128}")
    a(f"buffer_load_dword v{NEG+28}, v{V_T}, s[{WSRD}:{WSRD+3}], s6 offen")
    def kaddr():
        ops = [f"v_add_u32 v{V_T+4}, s{S_RD}, v{V_KL}"]
        for k in range(8): ops.append(f"v_xor_b32 v{V_A+k}, {k*32}, v{V_T+4}")
        return ops
    def vaddr():
        ops = [f"v_add_u32 v{V_T+4}, s{S_RD}, v{V_VL}"]
        for T in range(8): ops.append(f"v_xor_b32 v{V_A+T}, {T*32}, v{V_T+4}")
        return ops
    def kreads():
        return [f"ds_read_b64 {vr(KF + (kt*4 + j)*4 + 2*p, 2)}, v{V_A + 2*j + p} offset:{kt*4096}" for kt in range(2) for j in range(4) for p in range(2)]
    def vreads():
        return [f"ds_read_b64_tr_b16 {vr(VF + 4*T + 2*p, 2)}, v{V_A+T} offset:{p*4096}" for T in range(8) for p in range(2)]
    def adv_rd():
        return [f"s_add_u32 s{S_RD}, s{S_RD}, 8192", f"s_cmp_eq_u32 s{S_RD}, s{S_WREND}", f"s_cselect_b32 s{S_RD}, s{S_WR}, s{S_RD}"]
    def refill(kind):
        ins = []
        for it in dma_tile(kind, (S_RD, 0), (S_GOFF, 0), None): ins += it[0] + [it[1]]
        return ins
    def qk_list(jq):
        out = []
        for j in range(4):
            for kt in range(2):
                d = vr(sbuf(jq) + 4*kt, 4)
                cop = vr(NEG + 4*jq, 4) if j == 0 else d
                out.append(f"{MF} {d}, {vr(KF + (kt*4 + j)*4, 4)}, {qf(j, jq)}, {cop}")
        return out
    def pv_list(jq):
        return [f"{MF} {ar(oacc(T, jq), 4)}, {vr(VF + 4*T, 4)}, {vr(pbuf(jq), 4)}, {ar(oacc(T, jq), 4)}" for T in range(8)]
    def softmax(jq):
        Sb = sbuf(jq); Pb = pbuf(jq)
        T = [V_T + i for i in range(4)]
        ops = []
        def e(k):
            if not C.prescale: ops.append((f"v_mul_f32 v{T[k%4]}, s{S_SCALE}, v{Sb+k}", 4))
        def x(k): ops.append((f"v_exp_f32 v{T[k%4]}, v{(Sb+k) if C.prescale else T[k%4]}", 8))
        e(0); e(1); x(0); x(1)
        for j in range(4):
            if 2*j+2 < 8:
                e(2*j+2); e(2*j+3); x(2*j+2); x(2*j+3)
            else: ops.append(("s_nop 0", 4))
            A_, B_ = T[(2*j) % 4], T[(2*j+1) % 4]
            if j == 0: ops.append((f"v_add_f32 v{V_TS}, v{A_}, v{B_}", 4))
            else:
                ops.append((f"v_add_f32 v{V_TS}, v{V_TS}, v{A_}", 4))
                ops.append((f"v_add_f32 v{V_TS}, v{V_TS}, v{B_}", 4))
            ops.append((f"v_cvt_pk_bf16_f32 v{Pb+j}, v{A_}, v{B_}", 4))
        return ops
    def a_phase(NS, sfx):
        a(f"s_add_u32 s{S_WREND}, s{S_WR}, {NS*8192}")
        for i_ in range(2, NS):
            for it in dma_tile("K" if i_ % 2 == 0 else "V", (S_WR, i_*8192), (None, (i_ // 2)*8192), ("kv", i_)): emit_item(it)
        VW = (NS - 1)*8
        kindA = "K" if NS % 2 == 0 else "V"
        kindB = "V" if NS % 2 == 0 else "K"
        offA = lambda t1: ((2*t1 + NS) // 2)*8192
        offB = lambda t1: ((2*t1 + 1 + NS) // 2)*8192
        a(f"s_mov_b32 s{S_RD}, s{S_WR}")
        a(f"s_waitcnt vmcnt({VW + 2})")
        for o in kaddr(): a(o)
        for o in kreads(): a(o)
        a("s_waitcnt lgkmcnt(0)")
        a(f"s_mov_b32 s{S_GOFF}, {offA(0)}")
        for o in refill(kindA): a(o)
        for o in adv_rd(): a(o)
        a(f"s_waitcnt vmcnt({VW})")
        for o in vaddr(): a(o)
        for o in vreads(): a(o)
        for m in qk_list(0): a(m)
        a("s_waitcnt lgkmcnt(0)")
        a(f"s_mov_b32 s{S_GOFF}, {offB(0)}")
        for o in refill(kindB): a(o)
        for o in adv_rd(): a(o)
        a(f"s_mov_b32 s{S_CNT}, 0")
        a(f"s_mov_b32 s{S_GOFF}, {offA(1)}")
        a("s_nop 7")
        a.label(f"L_A{sfx}")
        tr.lds = []; tr.vm = []
        S = Sched(tr, budget=8)
        blocks = []
        for jq in range(7):
            q0 = len(S.M)
            for m in (qk_list(jq+1) if jq < 6 else qk_list(0)): S.mfma(m)
            p0 = len(S.M)
            for m in pv_list(jq): S.mfma(m)
            blocks.append((q0, p0))
        for jq in range(7):
            rdy = -1 if jq == 0 else blocks[jq-1][1] + 2
            due = blocks[jq][1] - 2
            for ins, c_ in softmax(jq): S.fill(ins, ready=rdy, due=due, cost=c_)
            S.fill(f"v_cmp_nge_f32 vcc, s{S_THR}, v{V_TS}", ready=rdy, due=due)
            S.fill(f"s_or_b64 vcc, vcc, s[{S_FIRST}:{S_FIRST+1}]", ready=rdy, due=due)
            S.fill(f"s_cbranch_vccnz L_rare{sfx}_{jq}", ready=rdy, due=due)
            S.fill(f"L_rare{sfx}_{jq}_ret:", ready=rdy, due=due, cost=0)
            S.fill(f"v_add_f32 v{V_L+jq}, v{V_L+jq}, v{V_TS}", ready=rdy, due=due)
        gk = blocks[5][1]
        def kreload():
            tr(f"s_waitcnt vmcnt({VW})")
            for o in kaddr(): tr(o)
            for o in kreads(): tr(o)
        S.at(gk - 1, kreload, cost=100)
        def kdone():
            tr("s_waitcnt lgkmcnt(0)")
            for o in refill(kindA): tr(o)
            for o in adv_rd(): tr(o)
        S.at(blocks[6][0] - 1, kdone, cost=100)
        S.emit()
        a(f"s_waitcnt vmcnt({VW})")
        for o in vaddr(): a(o)
        for o in vreads(): a(o)
        dAB = offB(1) - offA(1)
        if dAB: a(f"s_add_u32 s{S_GOFF}, s{S_GOFF}, {dAB}")
        a("s_waitcnt lgkmcnt(0)")
        for o in refill(kindB): a(o)
        if 8192 - dAB: a(f"s_add_u32 s{S_GOFF}, s{S_GOFF}, {8192 - dAB}")
        for o in adv_rd(): a(o)
        a(f"s_mov_b64 s[{S_FIRST}:{S_FIRST+1}], 0")
        a(f"s_add_u32 s{S_CNT}, s{S_CNT}, 1")
        a(f"s_cmp_lt_u32 s{S_CNT}, 16")
        a(f"s_cbranch_scc1 L_A{sfx}")
    versions = [(C.NS, "a")] if C.NS2 is None else [(C.NS, "a"), (C.NS2, "b")]
    if C.NS2 is None:
        a_phase(C.NS, "a")
    else:
        if C.xcc:
            a("s_getreg_b32 s6, hwreg(HW_REG_XCC_ID)")
            a("s_and_b32 s6, s6, 1")
        else:
            a("s_and_b32 s6, s2, 1")
        a("s_cmp_eq_u32 s6, 1")
        a("s_cbranch_scc1 L_Avb")
        a_phase(C.NS, "a")
        a("s_branch L_Adone")
        a.label("L_Avb")
        a_phase(C.NS2, "b")
        a.label("L_Adone")
    st()
    V_OW = 9; V_DO = 10; V_OA = 13; V_BA = 14
    u0, u1, u2 = 100, 101, 102
    a(f"v_lshlrev_b32 v{V_OW}, 4, v{V_LANE}")
    a(f"v_add_u32 v{V_BA}, 0, v{V_OW}")
    a(f"v_add_u32 v{V_OW}, s{S_WR}, v{V_OW}")
    a("s_mov_b32 s6, 0x2aaaaaab")
    for i in range(3):
        a(f"v_add_u32 v{u0}, {64*i}, v{V_LANE}")
        a(f"v_mul_hi_u32 v{u1}, v{u0}, s6")
        a(f"v_mul_u32_u24 v{u2}, 6, v{u1}")
        a(f"v_sub_u32 v{u2}, v{u0}, v{u2}")
        a(f"v_mul_u32_u24 v{u1}, 1152, v{u1}")
        a(f"v_lshl_add_u32 v{V_DO+i}, v{u2}, 4, v{u1}")
    a(f"v_lshrrev_b32 v{u0}, 4, v{V_LANE}")
    a(f"v_bfe_u32 v{u1}, v{V_LANE}, 2, 2")
    a(f"v_lshl_add_u32 v{u0}, v{u0}, 2, v{u1}")
    a(f"v_mul_u32_u24 v{u0}, 96, v{u0}")
    a(f"v_and_b32 v{u1}, 3, v{V_LANE}")
    a(f"v_lshl_add_u32 v{u0}, v{u1}, 3, v{u0}")
    a(f"s_add_u32 s6, s{S_WR}, 28672")
    a(f"v_add_u32 v{V_OA}, s6, v{u0}")
    a(f"s_mul_i32 s6, s{P+6}, {512*1152}")
    a(f"s_mul_i32 s7, s{S_WAVE}, 288")
    a(f"s_add_u32 s6, s6, s7")
    a(f"s_sub_u32 s7, {512*1152}, s7")
    srd(SRD_WO, WO, "s6", 0, "s7")
    a(f"s_mov_b32 s{S_OO}, 0")
    a("s_waitcnt vmcnt(0)")
    def dma_wo(pr):
        kap, gam = divmod(pr, 3) if not C.outg else (pr, 0)
        return [([f"s_add_u32 m0, s{S_WR}, {28672 + (pr % 4)*3072 + i*1024}"] + ([f"s_add_u32 s{S_T}, s{S_OO}, {kap*32*1152 + gam*96}"] if i == 0 else ["s_nop 0"]),
                 f"buffer_load_dwordx4 v{V_DO+i}, s[{SRD_WO}:{SRD_WO+3}], s{S_T} offen lds", ("wo", pr)) for i in range(3)]
    tr.vm = []
    for pi in range(4):
        for it in dma_wo(pi): emit_item(it)
    for jq in range(7):
        for o in xlane("v_add_f32", V_L + jq, V_T): a(o)
        a(f"v_rcp_f32 v{V_L+jq}, v{V_L+jq}")
        for jp in range(4):
            b = 32 + ((jq*4 + jp) % 4)*16
            for k in range(4):
                a(f"v_accvgpr_read_b32 v{b+k}, a{oacc(2*jp, jq)+k}")
                a(f"v_accvgpr_read_b32 v{b+4+k}, a{oacc(2*jp+1, jq)+k}")
            for k in range(8): a(f"v_mul_f32 v{b+k}, v{b+k}, v{V_L+jq}")
            for k in range(4): a(f"v_cvt_pk_bf16_f32 v{b+8+k}, v{b+2*k}, v{b+2*k+1}")
            a(f"ds_write_b128 v{V_OW}, {vr(b+8, 4)} offset:{(jq*4 + jp)*1024}")
    a(f"s_lshl_b32 s6, s{P+2}, 4")
    a(f"s_add_u32 s6, s6, s{P+4}")
    a(f"s_lshl_b32 s6, s6, 3")
    a(f"s_add_u32 s6, s6, s{P+6}")
    a(f"s_lshl_b32 s6, s6, 2")
    a(f"s_add_u32 s6, s6, s{S_WAVE}")
    if C.outg:
        a(f"s_mul_i32 s6, s6, 33792")
        srd(SRD_WS, WS, "s6", 0, 33792)
    else:
        a(f"s_lshl_b32 s6, s6, 15")
        srd(SRD_WS, WS, "s6", 0, 32768)
    a("s_waitcnt lgkmcnt(0)")
    a("s_barrier")
    st()
    if C.outg:
        BF = [32, 60]; ACCS = [88, 172]; ABA = 0; NBO = 4
        S_BH, S_BN, S_ON = 61, 62, 63
        V_L16 = V_BA + 2
        a(f"v_mov_b32 v{V_L16}, v{V_BA}")
        def bread(kl, jq):
            reg = V_BA if kl < 4 else V_BA + 1
            tr.ds(f"ds_read_b128 {vr(BF[kl%2] + 4*jq, 4)}, v{reg} offset:{(jq*4 + kl % 4)*1024}", ("B", kl))
        def aread(tile, k):
            pi, cl = divmod(tile, 3)
            tr.ds(f"ds_read_b64_tr_b16 {ar(ABA + 4*(tile % NBO) + 2*k, 2)}, v{V_OA} offset:{(pi % 4)*3072 + cl*32 + k*1536}", ("A", tile))
        def dma_wo2(pr):
            base = S_OO if pr < 4 else S_ON
            kl = pr % 4
            return [([f"s_add_u32 m0, s{S_WR}, {28672 + kl*3072 + i*1024}"] + ([f"s_add_u32 s{S_T}, s{base}, {kl*32*1152}"] if i == 0 else []),
                     f"buffer_load_dwordx4 v{V_DO+i}, s[{SRD_WO}:{SRD_WO+3}], s{S_T} offen lds", ("wo", pr)) for i in range(3)]
        vm_entry_o = [("wo", p) for p in range(4) for _ in range(3)]
        def body(gam, first, last, fillers=None):
            AC = ACCS[gam % 2]
            tr.lds = [("A", t_) for t_ in range(1, AH) for _ in range(2)]
            tr.vm = list(vm_entry_o)
            S = Sched(tr)
            NT = 12
            for tile in range(NT):
                kl, cl = divmod(tile, 3)
                for jq in range(7):
                    d = vr(AC + (cl*7 + jq)*4, 4)
                    cop = "0" if (first and kl == 0) else d
                    S.mfma(f"{MF} {d}, {ar(ABA + 4*(tile % NBO), 4)}, {vr(BF[kl%2] + 4*jq, 4)}, {cop}")
            for tile in range(NT):
                kl, cl = divmod(tile, 3)
                g0 = tile*7
                nt_ = tile + 1
                if not (last and nt_ == NT):
                    need = [("A", nt_)] + ([("B", nt_ // 3)] if nt_ % 3 == 0 else [])
                    S.at(g0 + 6, (lambda need=need: tr.wait_lds(*need)))
                nx = tile + AH
                if not (last and nx >= NT):
                    if nx % 3 == 0: S.at(g0, (lambda nx=nx: tr.wait_vm(("wo", nx // 3))))
                    S.at(g0 + 1, (lambda nx=nx: aread(nx, 0)))
                    S.at(g0 + 2, (lambda nx=nx: aread(nx, 1)))
                if cl == 2 and not last:
                    for k, it in enumerate(dma_wo2(kl + 4)):
                        S.at(g0 + 3 + k, (lambda it=it: emit_item(it)), cost=(8 if k == 0 else 4))
                if cl == 0 and not (last and kl == 3):
                    for jq in range(7):
                        S.at(g0 + 3 + (jq % 4) + (jq // 4)*7, (lambda kl=kl, jq=jq: bread(kl + 1, jq)))
            if fillers:
                for o in fillers: S.fill(o, ready=2)
            S.emit()
        def adv(gam_next_wrap):
            pass
        def set_bases():
            a(f"v_add_u32 v{V_BA}, s{S_BH}, v{V_L16}")
            a(f"v_add_u32 v{V_BA+1}, s{S_BN}, v{V_L16}")
        def store_ops(gam):
            AC = ACCS[gam % 2]
            ops = []
            for i in range(11):
                b = 20 + 0
                d = (2 if i % 2 == 0 else 6)
                t0_ = AC + (2*i)*4
                ops.append(f"v_cvt_pk_bf16_f32 v{d}, v{t0_}, v{t0_+1}")
                ops.append(f"v_cvt_pk_bf16_f32 v{d+1}, v{t0_+2}, v{t0_+3}")
                if i < 10:
                    ops.append(f"v_cvt_pk_bf16_f32 v{d+2}, v{t0_+4}, v{t0_+5}")
                    ops.append(f"v_cvt_pk_bf16_f32 v{d+3}, v{t0_+6}, v{t0_+7}")
                else:
                    ops.append(f"v_mov_b32 v{d+2}, 0"); ops.append(f"v_mov_b32 v{d+3}, 0")
                sl = gam*11 + i
                ops.append(f"s_mov_b32 s{S_T2}, {(sl // 4)*4096}")
                ops.append(f"buffer_store_dwordx4 {vr(d, 4)}, v1, s[{SRD_WS}:{SRD_WS+3}], s{S_T2} offen offset:{(sl % 4)*1024}{C.fst if C.fuse else C.st_flags}")
            return ops
        a(f"v_lshlrev_b32 v1, 4, v{V_LANE}")
        a(f"s_mov_b32 s{S_BH}, 0")
        a(f"s_mov_b32 s{S_BN}, {WR}")
        a(f"s_mov_b32 s{S_OO}, 0")
        a(f"s_mov_b32 s{S_ON}, {128*1152}")
        set_bases()
        tr.lds = []
        for jq in range(7): bread(0, jq)
        a("s_waitcnt vmcnt(9)")
        for tile in range(AH):
            aread(tile, 0); aread(tile, 1)
        a("s_waitcnt lgkmcnt(0)")
        def advance(gam, hh_static=None):
            a(f"s_mov_b32 s{S_BH}, s{S_BN}")
            a(f"s_mov_b32 s{S_OO}, s{S_ON}")
            a(f"s_add_u32 s{S_BN}, s{S_BN}, {WR}")
            a(f"s_add_u32 s{S_ON}, s{S_ON}, {128*1152}")
            a(f"s_cmp_eq_u32 s{S_BN}, {4*WR}")
            a(f"s_cselect_b32 s{S_BN}, 0, s{S_BN}")
            a(f"s_cselect_b32 s{S_ON}, {(gam+1)*96}, s{S_ON}")
            set_bases()
        for gam in range(3):
            fl = store_ops(gam - 1) if gam else None
            body(gam, True, False, fl)
            advance(gam)
            a(f"s_mov_b32 s{S_CNT}, 0")
            nloop = 3 if gam < 2 else 2
            a.label(f"L_O{gam}")
            body(gam, False, False)
            advance(gam)
            a(f"s_add_u32 s{S_CNT}, s{S_CNT}, 1")
            a(f"s_cmp_lt_u32 s{S_CNT}, {nloop}")
            a(f"s_cbranch_scc1 L_O{gam}")
            if gam == 2:
                body(gam, False, True)
        st()
        a("s_nop 7"); a("s_nop 7")
        for o in store_ops(2): a(o)
    else:
        BF = [32, 60]; AB = 88; NBO = 4
        def oa(ct, jq): return (ct*7 + jq)*4
        def bread(kl, jq):
            reg = V_BA if kl < 4 else V_BA + 1
            tr.ds(f"ds_read_b128 {vr(BF[kl%2] + 4*jq, 4)}, v{reg} offset:{(jq*4 + kl % 4)*1024}", ("B", kl))
        def aread(tile, k):
            pi, cl = divmod(tile, 3)
            tr.ds(f"ds_read_b64_tr_b16 {vr(AB + 4*(tile % NBO) + 2*k, 2)}, v{V_OA} offset:{(pi % 4)*3072 + cl*32 + k*1536}", ("A", tile))
        vm_entry_o = [("wo", p) for p in range(4) for _ in range(3)]
        def out_body(first, last, extra_fill=None):
            tr.lds = [("A", t_) for t_ in range(1, AH) for _ in range(2)]
            tr.vm = list(vm_entry_o)
            S = Sched(tr)
            NT = 36
            for tile in range(NT):
                kl, ct = divmod(tile, 9)
                for jq in range(7):
                    cop = "0" if (first and kl == 0) else ar(oa(ct, jq), 4)
                    S.mfma(f"{MF} {ar(oa(ct, jq), 4)}, {vr(AB + 4*(tile % NBO), 4)}, {vr(BF[kl%2] + 4*jq, 4)}, {cop}")
            for tile in range(NT):
                kl, ct = divmod(tile, 9)
                g0 = tile*7
                nt_ = tile + 1
                if not (last and nt_ == NT):
                    need = [("A", nt_)] + ([("B", nt_ // 9)] if nt_ % 9 == 0 else [])
                    S.at(g0 + 6, (lambda need=need: tr.wait_lds(*need)))
                nx = tile + AH
                if not (last and nx >= NT):
                    if nx % 3 == 0: S.at(g0, (lambda nx=nx: tr.wait_vm(("wo", nx // 3))))
                    S.at(g0 + 1, (lambda nx=nx: aread(nx, 0)))
                    S.at(g0 + 2, (lambda nx=nx: aread(nx, 1)))
                if tile % 3 == 2:
                    pi = tile // 3
                    if not (last and pi + 4 >= 12):
                        for k, it in enumerate(dma_wo(pi + 4)):
                            S.at(g0 + 3 + k, (lambda it=it: emit_item(it)), cost=12)
                if ct == 4 and not (last and kl == 3):
                    for jq in range(7):
                        S.at(g0 + 3 + (jq % 4) + (jq // 4)*7, (lambda kl=kl, jq=jq: bread(kl + 1, jq)))
            if extra_fill: extra_fill(S)
            S.emit()
        a(f"v_add_u32 v{V_BA+1}, {WR}, v{V_BA}")
        tr.lds = []
        for jq in range(7): bread(0, jq)
        a("s_waitcnt vmcnt(9)")
        for tile in range(AH):
            aread(tile, 0); aread(tile, 1)
        a("s_waitcnt lgkmcnt(0)")
        def adv_head():
            a(f"s_add_u32 s{S_OO}, s{S_OO}, {128*1152}")
            a(f"v_add_u32 v{V_BA}, {WR}, v{V_BA}")
            a(f"v_add_u32 v{V_BA+1}, {WR}, v{V_BA+1}")
        out_body(True, False)
        adv_head()
        a(f"s_mov_b32 s{S_CNT}, 0")
        a.label("L_O")
        out_body(False, False)
        adv_head()
        a(f"s_add_u32 s{S_CNT}, s{S_CNT}, 1")
        a(f"s_cmp_lt_u32 s{S_CNT}, 2")
        a("s_cbranch_scc1 L_O")
        a(f"v_lshlrev_b32 v1, 4, v{V_LANE}")
        done_pairs = [0]
        stf = C.fst if C.fuse else C.st_flags
        def store_pair(i):
            b = 104 + (i % 4)*16
            ops = []
            nt_ = 2 if i < 31 else 1
            for k in range(4*nt_): ops.append(f"v_accvgpr_read_b32 v{b+k}, a{8*i+k}")
            for k in range(2*nt_): ops.append(f"v_cvt_pk_bf16_f32 v{b+8+k}, v{b+2*k}, v{b+2*k+1}")
            if nt_ == 1:
                ops.append(f"v_mov_b32 v{b+10}, 0"); ops.append(f"v_mov_b32 v{b+11}, 0")
            ops.append(f"s_mov_b32 s{S_T2}, {(i // 4)*4096}")
            ops.append(f"buffer_store_dwordx4 {vr(b+8, 4)}, v1, s[{SRD_WS}:{SRD_WS+3}], s{S_T2} offen offset:{(i % 4)*1024}{stf}")
            return ops
        tailst = []
        def fill_stores(S):
            for i in range(32):
                tl = min(2*i + 1, 62)
                ct = tl // 7
                rdy = (27 + ct)*7 + (tl % 7) + 3
                for o in store_pair(i):
                    if rdy < len(S.M) - 1: S.fill(o, ready=rdy)
                    else: tailst.append(o)
        out_body(False, True, fill_stores)
        st()
        a("s_nop 7"); a("s_nop 7")
        for o in tailst: a(o)
    if C.fuse:
        OUTP, DBG = 88, 90
        a(f"s_load_dwordx2 s[{OUTP}:{OUTP+1}], s[0:1], 80")
        a(f"s_load_dwordx2 s[{DBG}:{DBG+1}], s[0:1], 88")
        a(f"s_lshl_b32 s{S_T}, s{P+2}, 4")
        a(f"s_add_u32 s{S_T}, s{S_T}, s{P+4}")
        a(f"s_lshl_b32 s{S_T2}, s{S_T}, 2")
        if C.stamp: a("s_memrealtime s[96:97]")
        a("s_waitcnt vmcnt(0) lgkmcnt(0)")
        if C.stamp: a("s_memrealtime s[98:99]")
        a("s_barrier")
        a(f"s_cmp_eq_u32 s{S_WAVE}, 0")
        a("s_cbranch_scc0 L_wait_done")
        a(f"v_mov_b32 v2, s{S_T2}")
        a("v_mov_b32 v3, 1")
        a(f"v_cmp_eq_u32 vcc, 0, v{V_LANE}")
        a("s_and_saveexec_b64 s[4:5], vcc")
        a(f"global_atomic_add v2, v3, s[{DBG}:{DBG+1}] sc1")
        a.label("L_poll")
        a(f"global_load_dword v4, v2, s[{DBG}:{DBG+1}] sc1")
        a("s_waitcnt vmcnt(0)")
        a("v_cmp_gt_u32 vcc, 8, v4")
        a("s_cbranch_vccz L_poll_done")
        a("s_sleep 2")
        a("s_branch L_poll")
        a.label("L_poll_done")
        a("s_mov_b64 exec, s[4:5]")
        a.label("L_wait_done")
        a("s_barrier")
        if C.stamp: a("s_memrealtime s[60:61]")
        if C.outg:
            RS = 92
            a(f"s_mov_b32 s{RS}, s{WS}")
            a(f"s_and_b32 s{RS+1}, s{WS+1}, 0xffff")
            a(f"s_mov_b32 s{RS+2}, {1024*33792}")
            a(f"s_mov_b32 s{RS+3}, 0x20000")
            OS = 8
            a(f"s_mov_b32 s{OS}, s{OUTP}")
            a(f"s_and_b32 s{OS+1}, s{OUTP+1}, 0xffff")
            a(f"s_mov_b32 s{OS+2}, {16*112*1152*2}")
            a(f"s_mov_b32 s{OS+3}, 0x20000")
            a(f"s_lshl_b32 s12, s{P+6}, 2")
            a(f"s_add_u32 s12, s12, s{S_WAVE}")
            a(f"v_lshlrev_b32 v5, 4, v{V_LANE}")
            a(f"s_mul_i32 s15, s{S_T}, {32*33792}")
            NTK = 5
            for k in range(NTK):
                a(f"s_add_u32 s13, s12, {32*k}")
                a(f"s_mul_i32 s14, s13, {(2**16 + 32)//33}")
                a("s_lshr_b32 s14, s14, 16")
                a("s_mul_i32 s16, s14, 33")
                a("s_sub_u32 s16, s13, s16")
                a(f"s_mul_i32 s17, s14, 33792")
                a("s_lshl_b32 s18, s16, 10")
                a("s_add_u32 s17, s17, s18")
                a("s_add_u32 s17, s17, s15")
                a("s_cmp_ge_u32 s13, 132")
                a("s_cselect_b32 s17, 0x7f000000, s17")
                a(f"s_mov_b32 s{36+2*k}, s14") if False else None
                a(f"v_writelane_b32 v10, s14, {k}")
                a(f"v_writelane_b32 v10, s16, {8+k}")
                a(f"v_writelane_b32 v10, s13, {16+k}")
                for p_ in range(8):
                    r0 = 32 + (k*8 + p_)*4
                    a(f"buffer_load_dwordx4 v[{r0}:{r0+3}], v5, s[{RS}:{RS+3}], s17 offen{C.fld}")
                    if p_ < 7: a(f"s_add_u32 s17, s17, {4*33792}")
            a(f"v_and_b32 v3, 15, v{V_LANE}")
            a(f"v_lshrrev_b32 v4, 4, v{V_LANE}")
            a(f"s_mul_i32 s18, s{P+4}, 112")
            a("v_add_u32 v6, s18, v3")
            a("s_movk_i32 s19, 2304")
            a("v_mul_lo_u32 v6, v6, s19")
            a("v_lshl_add_u32 v6, v4, 3, v6")
            a(f"s_mul_i32 s19, s{P+2}, 1152")
            for k in range(NTK):
                a(f"s_waitcnt vmcnt({(NTK-1-k)*8 + 2*k})")
                acc = 200 + (k % 2)*8
                for p_ in range(8):
                    for q in range(4):
                        src = 32 + (k*8 + p_)*4 + q
                        if p_ == 0:
                            a(f"v_lshlrev_b32 v{acc+2*q}, 16, v{src}")
                            a(f"v_and_b32 v{acc+2*q+1}, 0xffff0000, v{src}")
                        else:
                            a(f"v_lshlrev_b32 v8, 16, v{src}")
                            a(f"v_and_b32 v9, 0xffff0000, v{src}")
                            a(f"v_add_f32 v{acc+2*q}, v{acc+2*q}, v8")
                            a(f"v_add_f32 v{acc+2*q+1}, v{acc+2*q+1}, v9")
                o_ = 220 + (k % 2)*4
                for q in range(4): a(f"v_cvt_pk_bf16_f32 v{o_+q}, v{acc+2*q}, v{acc+2*q+1}")
                a(f"v_readlane_b32 s14, v10, {k}")
                a(f"v_readlane_b32 s16, v10, {8+k}")
                a(f"v_readlane_b32 s13, v10, {16+k}")
                a("s_nop 3")
                a(f"s_mul_i32 s20, s16, {(2**16 + 10)//11}")
                a("s_lshr_b32 s20, s20, 16")
                a("s_mul_i32 s21, s20, 11")
                a("s_sub_u32 s21, s16, s21")
                a("s_mul_i32 s20, s20, 96")
                a("s_mul_i32 s22, s14, 288")
                a("s_add_u32 s20, s20, s22")
                a("s_add_u32 s20, s20, s19")
                for h in range(2):
                    a("s_lshl_b32 s22, s21, 1")
                    if h: a("s_add_u32 s22, s22, 1")
                    a(f"s_mul_i32 s23, s22, {(2**16 + 6)//7}")
                    a("s_lshr_b32 s23, s23, 16")
                    a("s_mul_i32 s24, s23, 7")
                    a("s_sub_u32 s24, s22, s24")
                    a(f"s_mul_i32 s24, s24, {16*2304}")
                    a("s_lshl_b32 s23, s23, 5")
                    a("s_add_u32 s24, s24, s23")
                    a("s_add_u32 s24, s24, s20")
                    a("s_cmp_eq_u32 s22, 21")
                    a("s_cselect_b32 s24, 0x7f000000, s24")
                    a("s_cmp_ge_u32 s13, 132")
                    a("s_cselect_b32 s24, 0x7f000000, s24")
                    a(f"buffer_store_dwordx2 v[{o_+2*h}:{o_+2*h+1}], v6, s[{OS}:{OS+3}], s24 offen")
        else:
            RS = 92
            a(f"s_mov_b32 s{RS}, s{WS}")
            a(f"s_and_b32 s{RS+1}, s{WS+1}, 0xffff")
            a(f"s_mov_b32 s{RS+2}, {256*131072}")
            a(f"s_mov_b32 s{RS+3}, 0x20000")
            OS = 8
            a(f"s_mov_b32 s{OS}, s{OUTP}")
            a(f"s_and_b32 s{OS+1}, s{OUTP+1}, 0xffff")
            a(f"s_mov_b32 s{OS+2}, {16*112*1152*2}")
            a(f"s_mov_b32 s{OS+3}, 0x20000")
            a(f"s_lshl_b32 s12, s{P+6}, 2")
            a(f"s_add_u32 s12, s12, s{S_WAVE}")
            a(f"s_lshl_b32 s12, s12, 2")
            a(f"s_lshr_b32 s13, s12, 5")
            a(f"s_and_b32 s14, s12, 31")
            a(f"s_lshl_b32 s15, s{S_T}, 20")
            a(f"s_lshl_b32 s16, s13, 15")
            a(f"s_add_u32 s15, s15, s16")
            a(f"s_lshl_b32 s16, s14, 10")
            a(f"s_add_u32 s15, s15, s16")
            a(f"v_lshlrev_b32 v5, 4, v{V_LANE}")
            for p_ in range(8):
                for k in range(4):
                    r0 = 32 + (k*8 + p_)*4
                    a(f"buffer_load_dwordx4 v[{r0}:{r0+3}], v5, s[{RS}:{RS+3}], s15 offen offset:{k*1024}{C.fld}")
                if p_ < 7: a("s_add_u32 s15, s15, 131072")
            a(f"v_and_b32 v3, 15, v{V_LANE}")
            a(f"v_lshrrev_b32 v4, 4, v{V_LANE}")
            a(f"s_mul_i32 s18, s{P+4}, 112")
            a("v_add_u32 v6, s18, v3")
            a("s_movk_i32 s19, 2304")
            a("v_mul_lo_u32 v6, v6, s19")
            a("v_lshl_add_u32 v6, v4, 3, v6")
            a(f"s_mul_i32 s19, s{P+2}, 1152")
            a("s_mul_i32 s20, s13, 288")
            a("s_add_u32 s19, s19, s20")
            for k in range(4):
                pass
            a("s_waitcnt vmcnt(0)")
            if C.stamp: a("s_memrealtime s[62:63]")
            for k in range(4):
                acc = 160 + k*8
                for p_ in range(8):
                    for q in range(4):
                        src = 32 + (k*8 + p_)*4 + q
                        if p_ == 0:
                            a(f"v_lshlrev_b32 v{acc+2*q}, 16, v{src}")
                            a(f"v_and_b32 v{acc+2*q+1}, 0xffff0000, v{src}")
                        else:
                            a(f"v_lshlrev_b32 v8, 16, v{src}")
                            a(f"v_and_b32 v9, 0xffff0000, v{src}")
                            a(f"v_add_f32 v{acc+2*q}, v{acc+2*q}, v8")
                            a(f"v_add_f32 v{acc+2*q+1}, v{acc+2*q+1}, v9")
                for q in range(4): a(f"v_cvt_pk_bf16_f32 v{200+4*k+q}, v{acc+2*q}, v{acc+2*q+1}")
                for h in range(2):
                    a(f"s_add_u32 s21, s14, {k}")
                    a("s_lshl_b32 s22, s21, 1")
                    if h: a("s_add_u32 s22, s22, 1")
                    a(f"s_mul_i32 s23, s22, {(2**16 + 6)//7}")
                    a("s_lshr_b32 s23, s23, 16")
                    a("s_mul_i32 s24, s23, 7")
                    a("s_sub_u32 s24, s22, s24")
                    a(f"s_mul_i32 s24, s24, {16*2304}")
                    a("s_lshl_b32 s23, s23, 5")
                    a("s_add_u32 s24, s24, s23")
                    a("s_add_u32 s24, s24, s19")
                    a("s_cmp_eq_u32 s22, 63")
                    a("s_cselect_b32 s24, 0x7f000000, s24")
                    a(f"buffer_store_dwordx2 v[{200+4*k+2*h}:{201+4*k+2*h}], v6, s[{OS}:{OS+3}], s24 offen")
    if C.stamp:
        st()
        a("s_waitcnt vmcnt(0)")
        st()
        a("s_memrealtime s[68:69]")
        a("s_waitcnt lgkmcnt(0)")
        a(f"v_writelane_b32 v{V_STAMP}, s68, 63")
        a(f"v_writelane_b32 v{V_STAMP}, s70, 62")
        if not C.fuse:
            for k in range(5): a(f"v_writelane_b32 v{V_STAMP}, s{88+2*k}, {48+k}")
        else:
            for k, r_ in enumerate((96, 98, 60, 62)): a(f"v_writelane_b32 v{V_STAMP}, s{r_}, {48+k}")
        a(f"s_mov_b32 s{SRD_WS}, s{WS}")
        a(f"s_and_b32 s{SRD_WS+1}, s{WS+1}, 0xffff")
        a(f"s_mov_b32 s{SRD_WS+2}, 0x4000000")
        a(f"s_lshl_b32 s{S_T}, s2, 2")
        a(f"s_add_u32 s{S_T}, s{S_T}, s{S_WAVE}")
        a(f"s_lshl_b32 s{S_T}, s{S_T}, 8")
        a(f"s_add_u32 s{S_T}, s{S_T}, {40<<20}")
        a(f"v_lshlrev_b32 v1, 2, v{V_LANE}")
        a(f"buffer_store_dword v{V_STAMP}, v1, s[{SRD_WS}:{SRD_WS+3}], s{S_T} offen")
    a("s_endpgm")
    for _, sfx in versions:
        for jq in range(7):
            Sb = sbuf(jq)
            a.label(f"L_rare{sfx}_{jq}")
            a("s_nop 7")
            d, tm = V_T, V_T + 1
            a(f"v_max3_f32 v{d}, v{Sb}, v{Sb+1}, v{Sb+2}")
            a(f"v_max3_f32 v{tm}, v{Sb+3}, v{Sb+4}, v{Sb+5}")
            a(f"v_max3_f32 v{d}, v{d}, v{Sb+6}, v{Sb+7}")
            a(f"v_max_f32 v{d}, v{d}, v{tm}")
            for o in xlane("v_max_f32", d, tm): a(o)
            a(f"s_cmp_eq_u32 s{S_CNT}, 0")
            a(f"s_cbranch_scc1 L_rare{sfx}_{jq}_first")
            a(f"v_max_f32 v{d}, 0, v{d}")
            a(f"v_sub_f32 v{tm}, 0, v{d}") if C.prescale else a(f"v_mul_f32 v{tm}, s{S_NSC}, v{d}")
            a(f"v_exp_f32 v{tm}, v{tm}")
            a("s_nop 0")
            for T in range(8):
                for k in range(4):
                    a(f"v_accvgpr_read_b32 v{V_T+2}, a{oacc(T, jq)+k}")
                    a(f"v_mul_f32 v{V_T+2}, v{V_T+2}, v{tm}")
                    a(f"v_accvgpr_write_b32 a{oacc(T, jq)+k}, v{V_T+2}")
            a(f"v_mul_f32 v{V_L+jq}, v{V_L+jq}, v{tm}")
            a.label(f"L_rare{sfx}_{jq}_first")
            for k in range(8): a(f"v_sub_f32 v{Sb+k}, v{Sb+k}, v{d}")
            for k in range(4): a(f"v_sub_f32 v{NEG+4*jq+k}, v{NEG+4*jq+k}, v{d}")
            for ins, c_ in softmax(jq): a(ins)
            a("s_nop 1")
            a(f"s_branch L_rare{sfx}_{jq}_ret")
    a.label("L_exit")
    a("s_endpgm")
    a.label("L_code_end")
    return a.text()

def gen_reduce2():
    a = Asm()
    a("s_cmp_ge_u32 s2, 1056")
    a("s_cbranch_scc1 R_exit")
    a("s_load_dwordx2 s[4:5], s[0:1], 96")
    a("s_load_dwordx2 s[6:7], s[0:1], 80")
    a("v_lshrrev_b32 v1, 6, v0")
    a("v_and_b32 v2, 63, v0")
    a("v_readfirstlane_b32 s8, v1")
    a("s_lshl_b32 s9, s2, 2")
    a("s_add_u32 s9, s9, s8")
    a(f"s_mul_hi_u32 s11, s9, {(2**32 + 32)//33}")
    a("s_mul_i32 s12, s11, 33")
    a("s_sub_u32 s12, s9, s12")
    a("s_and_b32 s13, s11, 3")
    a("s_lshr_b32 s14, s11, 2")
    a(f"s_mul_i32 s15, s14, {32*33792}")
    a(f"s_mul_i32 s16, s13, 33792")
    a("s_add_u32 s15, s15, s16")
    a("s_lshl_b32 s16, s12, 10")
    a("s_add_u32 s15, s15, s16")
    a("s_waitcnt lgkmcnt(0)")
    a("s_mov_b32 s20, s4")
    a("s_and_b32 s21, s5, 0xffff")
    a(f"s_mov_b32 s22, {1024*33792}")
    a("s_mov_b32 s23, 0x20000")
    a("s_mov_b32 s24, s6")
    a("s_and_b32 s25, s7, 0xffff")
    a(f"s_mov_b32 s26, {16*112*1152*2}")
    a("s_mov_b32 s27, 0x20000")
    a("v_lshlrev_b32 v5, 4, v2")
    for p in range(8):
        a(f"buffer_load_dwordx4 v[{16+4*p}:{19+4*p}], v5, s[20:23], s15 offen")
        if p < 7: a(f"s_add_u32 s15, s15, {4*33792}")
    a("v_and_b32 v3, 15, v2")
    a("v_lshrrev_b32 v4, 4, v2")
    a("s_and_b32 s18, s14, 15")
    a("s_lshr_b32 s19, s14, 4")
    a("s_mul_i32 s18, s18, 112")
    a("s_movk_i32 s28, 2304")
    a("v_add_u32 v6, s18, v3")
    a("v_mul_lo_u32 v6, v6, s28")
    a("v_lshlrev_b32 v4, 3, v4")
    a("v_add_u32 v6, v6, v4")
    a("s_mul_i32 s19, s19, 1152")
    a("s_mul_i32 s29, s13, 288")
    a("s_add_u32 s19, s19, s29")
    a(f"s_mul_i32 s35, s12, {(2**16 + 10)//11}")
    a("s_lshr_b32 s35, s35, 16")
    a("s_mul_i32 s36, s35, 11")
    a("s_sub_u32 s36, s12, s36")
    a("s_mul_i32 s35, s35, 96")
    a("s_add_u32 s19, s19, s35")
    for k in range(2):
        a(f"s_lshl_b32 s30, s36, 1")
        if k: a("s_add_u32 s30, s30, 1")
        a(f"s_mul_i32 s31, s30, {(2**16 + 6)//7}")
        a("s_lshr_b32 s31, s31, 16")
        a("s_mul_i32 s32, s31, 7")
        a("s_sub_u32 s32, s30, s32")
        a(f"s_mul_i32 s32, s32, {16*2304}")
        a("s_lshl_b32 s31, s31, 5")
        a("s_add_u32 s32, s32, s31")
        a(f"s_add_u32 s{33+k}, s32, s19")
    a("s_cmp_eq_u32 s36, 10")
    a("s_cselect_b32 s34, 0x7f000000, s34")
    for p in range(8):
        a(f"s_waitcnt vmcnt({7-p})")
        for k in range(4):
            src = 16 + 4*p + k
            if p == 0:
                a(f"v_lshlrev_b32 v{48+2*k}, 16, v{src}")
                a(f"v_and_b32 v{49+2*k}, 0xffff0000, v{src}")
            else:
                a(f"v_lshlrev_b32 v8, 16, v{src}")
                a(f"v_and_b32 v9, 0xffff0000, v{src}")
                a(f"v_add_f32 v{48+2*k}, v{48+2*k}, v8")
                a(f"v_add_f32 v{49+2*k}, v{49+2*k}, v9")
    for k in range(4): a(f"v_cvt_pk_bf16_f32 v{56+k}, v{48+2*k}, v{49+2*k}")
    a("buffer_store_dwordx2 v[56:57], v6, s[24:27], s33 offen")
    a("buffer_store_dwordx2 v[58:59], v6, s[24:27], s34 offen")
    a.label("R_exit")
    a("s_endpgm")
    return a.text()

def generate(path):
    body = gen_main()
    red = gen_reduce2() if C.outg else gen_reduce()
    if C.fuse:
        txt = make_file([(KN, 256, 256, 163840)], [(KN, body, 512, 102, 256)])
        open(path, "w").write(txt)
        return
    ll = [("attn_main_kernel", 256, 256, 163840), ("attn_reduce_kernel", 1056 if C.outg else 1024, 256, 0)]
    if C.only == "main": ll = ll[:1]
    txt = make_file(ll, [("attn_main_kernel", body, 512, 100, 256), ("attn_reduce_kernel", red, 64, 40, 64)])
    open(path, "w").write(txt)

if __name__ == "__main__":
    out = sys.argv[1] if len(sys.argv) > 1 else "w3.s"
    for kv in sys.argv[2:]:
        k, v = kv.split("=")
        setattr(C, k, eval(v))
    generate(out)
```

```python
import sys, struct, math
from asmlib import *
from gen_w import Tracker, Sched, xlane, vr, ar, f2u, MF, gen_reduce as gen_reduce0
def gen_reduce():
    t = gen_reduce0()
    return t.replace("s15 offen", "s15 offen" + C.rld)

class Cfg:
    nt_kv = True
    THR = 0x47800000
    stamp = False
    st_flags = ""
    only = None
    AH = 2
    nobar = False
    rld = ""
    prescale = True
    outg = False
    NS = 4
    NS2 = None
    xcc = False
    fst = " sc0 sc1"
    fld = " sc0 sc1"
    fuse = False
    kvgap = 10
    codepf = False
    qnt = ""
    nodma = False
    noxread = False
C = Cfg()

WR = 40960
S_WAVE = 3
SRD_X = 8; SRD_WQ = 12; SRD_K = 16; SRD_V = 20; SRD_WO = 24; SRD_WS = 28
S_WR = 32; S_T = 33; S_T2 = 34; S_CNT = 35
S_RD = 36; S_GOFF = 37
S_THR = 38; S_SCALE = 39; S_NSC = 40
S_QO = 41
S_FIRST = 42
S_WREND = 44
S_XO = 45
S_XLDS = 46
S_OO = 47
S_P = 48
WSRD = 84
S_XTOG = 60
V_LANE = 0
V_DK = 1; V_DV = 5; V_KL = 7; V_VL = 8
V_A = 9; V_T = 17; V_TS = 23; V_L = 24; V_STAMP = 31

def gen_main():
    a = Asm()
    tr = Tracker(a)
    P = S_P
    nt = " nt" if C.nt_kv else ""
    stamp_i = [0]
    def st():
        if C.stamp:
            a("s_memtime s[64:65]")
            a("s_memrealtime s[66:67]")
            a("s_waitcnt lgkmcnt(0)")
            a(f"v_writelane_b32 v{V_STAMP}, s64, {stamp_i[0]}")
            a(f"v_writelane_b32 v{V_STAMP}, s66, {32 + stamp_i[0]}")
            tr.lds = []
        stamp_i[0] += 1
    X, K, V, WQ, WO, WS = 72, 74, 76, 78, 80, 82
    a("s_cmp_ge_u32 s2, 256")
    a("s_cbranch_scc1 L_exit")
    if C.codepf:
        a("s_getpc_b64 s[86:87]")
        a.label("L_pc")
        a("v_lshrrev_b32 v1, 6, v0")
        a("s_lshr_b32 s6, s2, 3")
        a("v_lshl_add_u32 v1, s6, 2, v1")
        a("v_mul_u32_u24 v2, 43691, v1")
        a("v_lshrrev_b32 v2, 18, v2")
        a("v_mul_u32_u24 v2, 6, v2")
        a("v_sub_u32 v1, v1, v2")
        a("v_lshlrev_b32 v1, 13, v1")
        a("v_and_b32 v2, 63, v0")
        a("v_lshl_add_u32 v1, v2, 7, v1")
        a("v_min_u32 v1, (L_code_end - L_pc - 4), v1")
        a("v_and_b32 v1, -4, v1")
        a("global_load_dword v23, v1, s[86:87]")
    a(f"s_and_b32 s{P+2}, s2, 1")
    a(f"s_mul_i32 s{P+7}, s{P+2}, 40")
    a(f"s_add_u32 s4, s0, s{P+7}")
    a("s_addc_u32 s5, s1, 0")
    a(f"s_load_dwordx2 s[{X}:{X+1}], s[4:5], 0")
    a(f"s_load_dwordx2 s[{WQ}:{WQ+1}], s[4:5], 24")
    a(f"s_load_dwordx2 s[{K}:{K+1}], s[4:5], 8")
    a(f"s_load_dwordx2 s[{V}:{V+1}], s[4:5], 16")
    a(f"s_load_dwordx2 s[{WO}:{WO+1}], s[4:5], 32")
    a(f"s_load_dwordx2 s[{WS}:{WS+1}], s[0:1], 96")
    if C.stamp: a("s_memrealtime s[70:71]")
    a(f"s_and_b32 s{P}, s2, 7")
    a(f"s_lshr_b32 s{P+1}, s2, 3")
    a(f"s_and_b32 s{P+5}, s{P+1}, 1")
    a(f"s_lshr_b32 s{P+3}, s{P}, 1")
    a(f"s_lshr_b32 s{P+4}, s{P+1}, 1")
    a(f"s_lshl_b32 s{P+6}, s{P+3}, 1")
    a(f"s_add_u32 s{P+6}, s{P+6}, s{P+5}")
    a("v_lshrrev_b32 v1, 6, v0")
    a(f"v_and_b32 v{V_LANE}, 63, v0")
    a(f"v_readfirstlane_b32 s{S_WAVE}, v1")
    L = V_LANE
    t0, t1, t2, t3, n, g, r, cc = 232, 233, 234, 235, 236, 237, 238, 239
    V_DQ = 9; V_DX = 13; V_XA = 14; V_QA = 15
    a(f"v_lshrrev_b32 v{t0}, 3, v{L}")
    a(f"v_and_b32 v{t1}, 7, v{L}")
    a(f"v_bfe_u32 v{t3}, v{L}, 4, 1")
    a(f"v_lshlrev_b32 v{t3}, 1, v{t3}")
    a(f"v_xor_b32 v{t3}, v{t3}, v{t1}")
    a(f"v_lshlrev_b32 v{t3}, 4, v{t3}")
    a(f"v_lshlrev_b32 v{t2}, 13, v{t0}")
    a(f"v_add_u32 v{V_DQ}, v{t2}, v{t3}")
    a(f"v_xor_b32 v{V_DQ+1}, 64, v{V_DQ}")
    a(f"v_add_u32 v{V_DQ+1}, {65536-1024}, v{V_DQ+1}")
    a(f"v_add_u32 v{V_DQ+2}, {2*(65536-1024)}, v{V_DQ}")
    a(f"v_add_u32 v{V_DQ+3}, {2*(65536-1024)}, v{V_DQ+1}")
    a(f"v_lshrrev_b32 v{g}, 4, v{L}")
    a(f"v_and_b32 v{cc}, 3, v{L}")
    a(f"v_lshrrev_b32 v{t0}, 2, v{L}")
    a(f"v_sub_u32 v{t1}, 0, v{g}")
    a(f"v_and_b32 v{t1}, 3, v{t1}")
    a(f"v_xor_b32 v{t1}, v{t1}, v{cc}")
    a(f"v_lshlrev_b32 v{t1}, 4, v{t1}")
    a(f"v_mul_u32_u24 v{t2}, 1152, v{t0}")
    a(f"v_add_u32 v{V_DX}, v{t2}, v{t1}")
    a(f"s_mul_i32 s{S_WR}, s{S_WAVE}, {WR}")
    a(f"s_mul_i32 s{S_XO}, s{S_WAVE}, {16*1152}")
    a(f"s_lshl_b32 s{S_XLDS}, s{S_WAVE}, 10")
    a(f"s_lshl_b32 s6, s{P+6}, 2")
    a(f"s_add_u32 s{P+8}, s6, s{S_WAVE}")
    a(f"s_mov_b32 s{S_QO}, 0")
    a("s_waitcnt lgkmcnt(0)")
    def srd(dst, ptr, off_lo, off_hi, size):
        a(f"s_add_u32 s{dst}, s{ptr}, {off_lo}")
        a(f"s_addc_u32 s{dst+1}, s{ptr+1}, {off_hi}")
        a(f"s_and_b32 s{dst+1}, s{dst+1}, 0xffff")
        a(f"s_mov_b32 s{dst+2}, {size}")
        a(f"s_mov_b32 s{dst+3}, 0x20000")
    if C.stamp: a("s_memrealtime s[88:89]")
    a(f"s_lshl_b32 s6, s{P+8}, 8")
    a(f"s_sub_u32 s7, {576*8192}, s6")
    srd(SRD_WQ, WQ, "s6", 0, "s7")
    a(f"s_mul_i32 s6, s{P+4}, 129024")
    srd(SRD_X, X, "s6", 0, 129024)
    XSL = [32768, WR + 32768]
    def dma_wq(ksr, h):
        return [(([f"s_add_u32 m0, s{S_WR}, {16384 + (ksr%2)*8192 + h*4096}",
                   f"s_add_u32 s{S_T}, s{S_QO}, {32*ksr*8192 + h*128}"] if p == 0 else []),
                 f"buffer_load_dwordx4 v{V_DQ + p}, s[{SRD_WQ}:{SRD_WQ+3}], s{S_T} offen offset:{p*1024}{C.qnt} lds", ("wq", ksr, h)) for p in range(4)]
    def dma_x(pr, par=0):
        return [([f"s_add_u32 m0, s{S_XLDS}, {32768 + par*2*WR + sub*WR + k*4096}",
                  f"s_add_u32 s{S_T}, s{S_XO}, {k*64*1152 + (2*pr + sub)*64}"],
                 f"buffer_load_dwordx4 v{V_DX}, s[{SRD_X}:{SRD_X+3}], s{S_T} offen{C.qnt} lds", ("x", pr)) for sub in range(2) for k in range(2)]
    def emit_item(it):
        for s_ in it[0]: tr(s_)
        tr.vmem(it[1], it[2])
    for it in dma_wq(0, 0) + dma_x(0) + dma_wq(0, 1) + dma_wq(1, 0) + dma_wq(1, 1) + dma_x(1, 1): emit_item(it)
    a(f"s_mov_b32 s{S_XTOG}, {2*WR}")
    if C.stamp: a("s_memrealtime s[90:91]")
    a(f"s_lshl_b32 s6, s{P+4}, 5")
    a(f"s_add_u32 s6, s6, s{P+8}")
    a(f"s_lshl_b32 s6, s6, 17")
    srd(SRD_K, K, "s6", 0, 131072)
    srd(SRD_V, V, "s6", 0, 131072)
    a(f"s_lshl_b32 s6, s{P+3}, 11")
    a(f"s_sub_u32 s7, {576*8192}, s6")
    srd(WSRD, WQ, "s6", 0, "s7")
    a(f"s_lshl_b32 s6, s{P+1}, 2")
    a(f"s_add_u32 s6, s6, s{S_WAVE}")
    a(f"s_mul_i32 s{P+9}, s6, 72")
    a(f"v_mov_b32 v{t1}, 0x7fffff00")
    a(f"v_cmp_gt_u32 vcc, 36, v{L}")
    for k in range(2):
        a(f"v_add_u32 v{t0}, s{P+9}, v{L}")
        if k: a(f"v_add_u32 v{t0}, 36, v{t0}")
        a(f"v_lshrrev_b32 v{t2}, 4, v{t0}")
        a(f"v_lshlrev_b32 v{t2}, 13, v{t2}")
        a(f"v_and_b32 v{t0}, 15, v{t0}")
        a(f"v_lshl_add_u32 v{t0}, v{t0}, 7, v{t2}")
        a(f"v_cndmask_b32 v{t0}, v{t1}, v{t0}, vcc")
        tr.vmem(f"buffer_load_dword v{V_TS}, v{t0}, s[{WSRD}:{WSRD+3}], 0 offen{C.qnt}", "warm")
    if C.stamp: a("s_memrealtime s[92:93]")
    if C.stamp: a(f"v_mov_b32 v{V_STAMP}, 0")
    a(f"v_and_b32 v{n}, 15, v{L}")
    a(f"v_bfe_u32 v{r}, v{L}, 2, 2")
    a(f"s_mov_b32 s{S_THR}, {C.THR:#x}")
    sc = math.log2(math.e) / math.sqrt(128.0)
    a(f"s_mov_b32 s{S_SCALE}, {f2u(sc):#x}")
    a(f"s_mov_b32 s{S_NSC}, {f2u(-sc):#x}")
    a(f"v_lshrrev_b32 v{t0}, 1, v{r}")
    a(f"v_and_b32 v{t1}, 1, v{g}")
    a(f"v_lshl_or_b32 v{t0}, v{t1}, 1, v{t0}")
    a(f"v_lshlrev_b32 v{t0}, 1, v{t0}")
    a(f"v_lshrrev_b32 v{t1}, 1, v{cc}")
    a(f"v_xor_b32 v{t0}, v{t0}, v{t1}")
    a(f"v_lshlrev_b32 v{t0}, 4, v{t0}")
    a(f"v_lshl_add_u32 v{t1}, v{g}, 3, v{r}")
    a(f"v_lshl_add_u32 v{t0}, v{t1}, 7, v{t0}")
    a(f"v_and_b32 v{t1}, 1, v{cc}")
    a(f"v_lshl_add_u32 v{t0}, v{t1}, 3, v{t0}")
    a(f"s_add_u32 s6, s{S_WR}, 16384")
    a(f"v_add_u32 v{t0}, s6, v{t0}")
    for Tl in range(4): a(f"v_xor_b32 v{V_QA+Tl}, {Tl*32}, v{t0}")
    a(f"v_lshrrev_b32 v{t0}, 2, v{n}")
    a(f"v_sub_u32 v{t0}, 0, v{t0}")
    a(f"v_and_b32 v{t0}, 3, v{t0}")
    a(f"v_xor_b32 v{t0}, v{t0}, v{g}")
    a(f"v_lshlrev_b32 v{t0}, 4, v{t0}")
    a(f"v_lshl_add_u32 v{t0}, v{n}, 6, v{t0}")
    a(f"v_add_u32 v{V_XA}, 32768, v{t0}")
    a(f"v_and_b32 v{t1}, 15, v{L}")
    a(f"v_lshlrev_b32 v{t2}, 8, v{g}")
    for q in range(4):
        a(f"v_add_u32 v{t3}, {4*q}, v{g}")
        a(f"v_xor_b32 v{t3}, v{t3}, v{t1}")
        a(f"v_lshl_add_u32 v{V_DK+q}, v{t3}, 4, v{t2}")
    a(f"v_lshlrev_b32 v{t3}, 1, v{g}")
    a(f"v_xor_b32 v{t3}, v{t3}, v{t1}")
    a(f"v_lshl_add_u32 v{V_DV}, v{t3}, 4, v{t2}")
    a(f"v_xor_b32 v{V_DV+1}, 128, v{V_DV}")
    a(f"v_lshrrev_b32 v{t0}, 1, v{g}")
    a(f"v_xor_b32 v{t0}, v{t0}, v{n}")
    a(f"v_lshlrev_b32 v{t0}, 4, v{t0}")
    a(f"v_lshl_add_u32 v{t0}, v{n}, 8, v{t0}")
    a(f"v_and_b32 v{t1}, 1, v{g}")
    a(f"v_lshl_add_u32 v{V_KL}, v{t1}, 3, v{t0}")
    a(f"v_lshl_add_u32 v{t0}, v{g}, 2, v{r}")
    a(f"v_and_b32 v{t1}, 7, v{t0}")
    a(f"v_lshlrev_b32 v{t1}, 1, v{t1}")
    a(f"v_lshrrev_b32 v{t2}, 1, v{cc}")
    a(f"v_xor_b32 v{t1}, v{t1}, v{t2}")
    a(f"v_lshlrev_b32 v{t1}, 4, v{t1}")
    a(f"v_lshl_add_u32 v{t0}, v{t0}, 8, v{t1}")
    a(f"v_and_b32 v{t1}, 1, v{cc}")
    a(f"v_lshl_add_u32 v{V_VL}, v{t1}, 3, v{t0}")
    def dma_tile(kind, lds_expr, goff_expr, tag):
        items = []
        for h in range(2):
            for q in range(4):
                pre = []
                if q == 0:
                    pre.append(f"s_add_u32 m0, s{lds_expr[0]}, {lds_expr[1] + h*4096}")
                    if goff_expr[0] is None: pre.append(f"s_mov_b32 s{S_T}, {goff_expr[1] + h*4096}")
                    else: pre.append(f"s_add_u32 s{S_T}, s{goff_expr[0]}, {goff_expr[1] + h*4096}")
                if kind == "K":
                    ins = f"buffer_load_dwordx4 v{V_DK+q}, s[{SRD_K}:{SRD_K+3}], s{S_T} offen offset:{q*1024}{nt} lds"
                else:
                    ins = f"buffer_load_dwordx4 v{V_DV + (q & 1)}, s[{SRD_V}:{SRD_V+3}], s{S_T} offen offset:{q*1024}{nt} lds"
                items.append((pre, ins, tag))
        return items
    if C.stamp: a("s_memrealtime s[94:95]")
    QACC = 32
    def qacc(T, jq): return QACC + (T*7 + jq)*4
    XF = [0, 28]; WB = 56; NB = 4; AH = C.AH
    for k in range(4): a(f"v_mov_b32 v{252+k}, 0")
    for jq in range(7): a(f"v_mov_b32 v{V_L+jq}, 0")
    a("s_nop 1")
    for k in range(80, 224, 16): a(f"v_mfma_f32_32x32x16_bf16 a[{k}:{k+15}], v[252:255], v[252:255], 0")
    st()
    def xread(ksr, jq):
        tr.ds(f"ds_read_b128 {ar(XF[ksr%2] + 4*jq, 4)}, v{V_XA} offset:{(ksr % 2)*WR + jq*1024}", ("X", ksr))
    def wread(tile, k):
        ksr, T = divmod(tile, 8)
        off = (ksr % 2)*8192 + (T // 4)*4096 + k*512
        tr.ds(f"ds_read_b64_tr_b16 {ar(WB + 4*(tile % NB) + 2*k, 2)}, v{V_QA + T % 4} offset:{off}", ("A", tile))
    tr.wait_vm(("x", 0), ("wq", 0, 0))
    a("s_barrier")
    if C.stamp: a("s_memrealtime s[96:97]")
    for jq in range(7): xread(0, jq)
    for tile in range(AH):
        wread(tile, 0); wread(tile, 1)
    a("s_waitcnt lgkmcnt(0)")
    a(f"s_mov_b32 s{S_CNT}, 0")
    vm_entry = [("wq", 0, 0)]*4 + [("wq", 0, 1)]*4 + [("wq", 1, 0)]*4 + [("x", 1)]*4 + [("wq", 1, 1)]*4
    def qf(j, jq):
        f = j*7 + jq
        return vr(32 + 4*f, 4) if f < 20 else ar(224 + 4*(f - 20), 4)
    def q_body(last, first=False):
        tr.lds = [("A", t_) for t_ in range(1, AH) for _ in range(2)]
        if not first: tr.vm = list(vm_entry)
        S = Sched(tr)
        NT = 16
        order = list(range(16))
        for tile in range(NT):
            ksr, T = divmod(tile, 8)
            for jq in range(7):
                cop = "0" if (first and ksr == 0) else vr(qacc(T, jq), 4)
                S.mfma(f"{MF} {vr(qacc(T, jq), 4)}, {ar(WB + 4*(tile % NB), 4)}, {ar(XF[ksr%2] + 4*jq, 4)}, {cop}")
        for tile in range(NT):
            ksr, T = divmod(tile, 8)
            g0 = tile*7
            nxt_tile = tile + 1
            nks, nT = divmod(nxt_tile, 8)
            if not (last and nxt_tile == 16):
                need = [("A", nxt_tile)] + ([("X", nks)] if nT == 0 else [])
                S.at(g0 + 6, (lambda need=need: tr.wait_lds(*need)))
            nx = tile + AH
            if not (last and nx >= 16):
                nks2, nT2 = divmod(nx, 8)
                if nT2 % 4 == 0:
                    S.at(g0, (lambda nks2=nks2, nT2=nT2: tr.wait_vm(("wq", nks2, nT2 // 4))))
                S.at(g0 + 1, (lambda nx=nx: wread(nx, 0)))
                S.at(g0 + 2, (lambda nx=nx: wread(nx, 1)))
            if T % 4 == 3 and not last:
                its = dma_wq(ksr + 2, T // 4)
                gaps = [g0 + 3, g0 + 4, g0 + 5, g0 + 6] if True else None
                for k, it in enumerate(its):
                    if not (C.nodma and not first): S.at(gaps[k], (lambda it=it: emit_item(it)), cost=(8 if k == 0 else 4))
            if T == 4 and ksr == 0:
                for jq in range(7):
                    S.at(g0 + 3 + (jq % 3) + (jq // 3)*7, (lambda jq=jq: xread(1, jq)))
            if T == 4 and ksr == 1 and not last:
                def midbar():
                    tr.wait_vm(("x", 1))
                    if not C.nobar: tr("s_barrier")
                    tr(f"v_add_u32 v{V_XA}, s{S_XTOG}, v{V_XA}")
                S.at(g0 + 3, midbar, cost=12)
                for k, it in enumerate(dma_x(2)):
                    S.at(g0 + 5 + 7*(k % 3) + (k // 3), (lambda it=it: emit_item(it)), cost=12)
                for jq in range(7):
                    S.at(g0 + 7 + 3 + (jq % 3) + (jq // 3)*7, (lambda jq=jq: xread(2, jq)))
        tail = []
        if last:
            kv = dma_tile("K", (S_WR, 0), (None, 0), ("kv", 0)) + dma_tile("V", (S_WR, 8192), (None, 0), ("kv", 1))
            for k, it in enumerate(kv):
                S.at(C.kvgap*7 + 3 + 2*k, (lambda it=it: emit_item(it)), cost=8)
            for j in range(4):
                rdy = (8 + 2*j + 1)*7 + 6 + 3
                for jq in range(7):
                    f = j*7 + jq
                    A0, A1 = qacc(2*j, jq), qacc(2*j+1, jq)
                    if f < 20:
                        d = 32 + 4*f
                        ops = [f"v_cvt_pk_bf16_f32 v{d}, v{A0}, v{A0+1}", f"v_cvt_pk_bf16_f32 v{d+1}, v{A0+2}, v{A0+3}",
                               f"v_cvt_pk_bf16_f32 v{d+2}, v{A1}, v{A1+1}", f"v_cvt_pk_bf16_f32 v{d+3}, v{A1+2}, v{A1+3}"]
                    else:
                        d = 224 + 4*(f - 20)
                        ops = [f"v_cvt_pk_bf16_f32 v{V_T+k}, v{x_}, v{y_}" for k, (x_, y_) in enumerate(((A0, A0+1), (A0+2, A0+3), (A1, A1+1), (A1+2, A1+3)))]
                        ops += [f"v_accvgpr_write_b32 a{d+k}, v{V_T+k}" for k in range(4)]
                    if C.prescale:
                        ops = [f"v_mul_f32 v{x_}, s{S_SCALE}, v{x_}" for x_ in (A0, A0+1, A0+2, A0+3, A1, A1+1, A1+2, A1+3)] + ops
                    for o in ops:
                        if rdy < len(S.M): S.fill(o, ready=rdy)
                        else: tail.append(o)
        S.emit()
        return tail
    def q_adv():
        a(f"s_add_u32 s{S_QO}, s{S_QO}, {64*8192}")
        a(f"s_add_u32 s{S_XO}, s{S_XO}, 128")
        a(f"s_add_u32 s{S_XLDS}, s{S_XLDS}, s{S_XTOG}")
        a(f"s_sub_u32 s{S_XTOG}, 0, s{S_XTOG}")
    q_body(False, True)
    q_adv()
    a.label("L_Q")
    q_body(False)
    if C.stamp:
        a("s_memtime s[64:65]")
        a("s_waitcnt lgkmcnt(0)")
        a(f"s_add_u32 s66, s{S_CNT}, 8")
        a(f"v_mov_b32 v{V_TS}, s64")
        a(f"v_cmp_ne_u32 vcc, s66, v{V_LANE}")
        a("s_nop 1")
        a(f"v_cndmask_b32 v{V_STAMP}, v{V_TS}, v{V_STAMP}, vcc")
    q_adv()
    a(f"s_add_u32 s{S_CNT}, s{S_CNT}, 1")
    a(f"s_cmp_lt_u32 s{S_CNT}, 7")
    a("s_cbranch_scc1 L_Q")
    tail = q_body(True)
    a("s_waitcnt lgkmcnt(0)")
    a("s_barrier")
    for o in tail: a(o)
    st()
    KF = 112; VF = 144; SB = 176; PB = 200; NEG = 212
    def sbuf(jq): return SB + 8*(0 if jq == 0 else 1 + (jq - 1) % 2)
    def pbuf(jq): return PB + 4*(0 if jq == 0 else 1 + (jq - 1) % 2)
    def oacc(T, jq): return (T*7 + jq)*4
    for k in range(4): a(f"v_mov_b32 v{18+k}, 0")
    a("s_nop 1")
    for k in range(0, 80, 16): a(f"v_mfma_f32_32x32x16_bf16 a[{k}:{k+15}], v[18:21], v[18:21], 0")
    a(f"v_mfma_f32_32x32x16_bf16 v[{NEG}:{NEG+15}], v[18:21], v[18:21], 0")
    a(f"v_mfma_f32_32x32x16_bf16 v[{NEG+12}:{NEG+27}], v[18:21], v[18:21], 0")
    a("s_nop 7")
    a(f"s_mov_b64 s[{S_FIRST}:{S_FIRST+1}], -1")
    a(f"s_mul_i32 s6, s{P+3}, {8*128*1152}")
    srd(WSRD, WO, "s6", 0, 8*128*1152)
    a(f"s_lshl_b32 s6, s{P+9}, 7")
    a(f"v_lshlrev_b32 v{V_T}, 7, v{V_LANE}")
    a(f"v_mov_b32 v{V_T+1}, 0x7fffff00")
    a(f"v_cmp_gt_u32 vcc, 36, v{V_LANE}")
    a("s_nop 1")
    a(f"v_cndmask_b32 v{V_T}, v{V_T+1}, v{V_T}, vcc")
    a(f"buffer_load_dword v{NEG+28}, v{V_T}, s[{WSRD}:{WSRD+3}], s6 offen")
    a(f"s_add_u32 s6, s6, {36*128}")
    a(f"buffer_load_dword v{NEG+28}, v{V_T}, s[{WSRD}:{WSRD+3}], s6 offen")
    def kaddr():
        ops = [f"v_add_u32 v{V_T+4}, s{S_RD}, v{V_KL}"]
        for k in range(8): ops.append(f"v_xor_b32 v{V_A+k}, {k*32}, v{V_T+4}")
        return ops
    def vaddr():
        ops = [f"v_add_u32 v{V_T+4}, s{S_RD}, v{V_VL}"]
        for T in range(8): ops.append(f"v_xor_b32 v{V_A+T}, {T*32}, v{V_T+4}")
        return ops
    def kreads():
        return [f"ds_read_b64 {vr(KF + (kt*4 + j)*4 + 2*p, 2)}, v{V_A + 2*j + p} offset:{kt*4096}" for kt in range(2) for j in range(4) for p in range(2)]
    def vreads():
        return [f"ds_read_b64_tr_b16 {vr(VF + 4*T + 2*p, 2)}, v{V_A+T} offset:{p*4096}" for T in range(8) for p in range(2)]
    def adv_rd():
        return [f"s_add_u32 s{S_RD}, s{S_RD}, 8192", f"s_cmp_eq_u32 s{S_RD}, s{S_WREND}", f"s_cselect_b32 s{S_RD}, s{S_WR}, s{S_RD}"]
    def refill(kind):
        ins = []
        for it in dma_tile(kind, (S_RD, 0), (S_GOFF, 0), None): ins += it[0] + [it[1]]
        return ins
    def qk_list(jq):
        out = []
        for j in range(4):
            for kt in range(2):
                d = vr(sbuf(jq) + 4*kt, 4)
                cop = vr(NEG + 4*jq, 4) if j == 0 else d
                out.append(f"{MF} {d}, {vr(KF + (kt*4 + j)*4, 4)}, {qf(j, jq)}, {cop}")
        return out
    def pv_list(jq):
        return [f"{MF} {ar(oacc(T, jq), 4)}, {vr(VF + 4*T, 4)}, {vr(pbuf(jq), 4)}, {ar(oacc(T, jq), 4)}" for T in range(8)]
    def softmax(jq):
        Sb = sbuf(jq); Pb = pbuf(jq)
        T = [V_T + i for i in range(4)]
        ops = []
        def e(k):
            if not C.prescale: ops.append((f"v_mul_f32 v{T[k%4]}, s{S_SCALE}, v{Sb+k}", 4))
        def x(k): ops.append((f"v_exp_f32 v{T[k%4]}, v{(Sb+k) if C.prescale else T[k%4]}", 8))
        e(0); e(1); x(0); x(1)
        for j in range(4):
            if 2*j+2 < 8:
                e(2*j+2); e(2*j+3); x(2*j+2); x(2*j+3)
            else: ops.append(("s_nop 0", 4))
            A_, B_ = T[(2*j) % 4], T[(2*j+1) % 4]
            if j == 0: ops.append((f"v_add_f32 v{V_TS}, v{A_}, v{B_}", 4))
            else:
                ops.append((f"v_add_f32 v{V_TS}, v{V_TS}, v{A_}", 4))
                ops.append((f"v_add_f32 v{V_TS}, v{V_TS}, v{B_}", 4))
            ops.append((f"v_cvt_pk_bf16_f32 v{Pb+j}, v{A_}, v{B_}", 4))
        return ops
    def a_phase(NS, sfx):
        a(f"s_add_u32 s{S_WREND}, s{S_WR}, {NS*8192}")
        for i_ in range(2, NS):
            for it in dma_tile("K" if i_ % 2 == 0 else "V", (S_WR, i_*8192), (None, (i_ // 2)*8192), ("kv", i_)): emit_item(it)
        VW = (NS - 1)*8
        kindA = "K" if NS % 2 == 0 else "V"
        kindB = "V" if NS % 2 == 0 else "K"
        offA = lambda t1: ((2*t1 + NS) // 2)*8192
        offB = lambda t1: ((2*t1 + 1 + NS) // 2)*8192
        a(f"s_mov_b32 s{S_RD}, s{S_WR}")
        a(f"s_waitcnt vmcnt({VW + 2})")
        for o in kaddr(): a(o)
        for o in kreads(): a(o)
        a("s_waitcnt lgkmcnt(0)")
        a(f"s_mov_b32 s{S_GOFF}, {offA(0)}")
        for o in refill(kindA): a(o)
        for o in adv_rd(): a(o)
        a(f"s_waitcnt vmcnt({VW})")
        for o in vaddr(): a(o)
        for o in vreads(): a(o)
        for m in qk_list(0): a(m)
        a("s_waitcnt lgkmcnt(0)")
        a(f"s_mov_b32 s{S_GOFF}, {offB(0)}")
        for o in refill(kindB): a(o)
        for o in adv_rd(): a(o)
        a(f"s_mov_b32 s{S_CNT}, 0")
        a(f"s_mov_b32 s{S_GOFF}, {offA(1)}")
        a("s_nop 7")
        a.label(f"L_A{sfx}")
        tr.lds = []; tr.vm = []
        S = Sched(tr, budget=8)
        blocks = []
        for jq in range(7):
            q0 = len(S.M)
            for m in (qk_list(jq+1) if jq < 6 else qk_list(0)): S.mfma(m)
            p0 = len(S.M)
            for m in pv_list(jq): S.mfma(m)
            blocks.append((q0, p0))
        for jq in range(7):
            rdy = -1 if jq == 0 else blocks[jq-1][1] + 2
            due = blocks[jq][1] - 2
            for ins, c_ in softmax(jq): S.fill(ins, ready=rdy, due=due, cost=c_)
            S.fill(f"v_cmp_nge_f32 vcc, s{S_THR}, v{V_TS}", ready=rdy, due=due)
            S.fill(f"s_or_b64 vcc, vcc, s[{S_FIRST}:{S_FIRST+1}]", ready=rdy, due=due)
            S.fill(f"s_cbranch_vccnz L_rare{sfx}_{jq}", ready=rdy, due=due)
            S.fill(f"L_rare{sfx}_{jq}_ret:", ready=rdy, due=due, cost=0)
            S.fill(f"v_add_f32 v{V_L+jq}, v{V_L+jq}, v{V_TS}", ready=rdy, due=due)
        gk = blocks[5][1]
        def kreload():
            tr(f"s_waitcnt vmcnt({VW})")
            for o in kaddr(): tr(o)
            for o in kreads(): tr(o)
        S.at(gk - 1, kreload, cost=100)
        def kdone():
            tr("s_waitcnt lgkmcnt(0)")
            for o in refill(kindA): tr(o)
            for o in adv_rd(): tr(o)
        S.at(blocks[6][0] - 1, kdone, cost=100)
        S.emit()
        a(f"s_waitcnt vmcnt({VW})")
        for o in vaddr(): a(o)
        for o in vreads(): a(o)
        dAB = offB(1) - offA(1)
        if dAB: a(f"s_add_u32 s{S_GOFF}, s{S_GOFF}, {dAB}")
        a("s_waitcnt lgkmcnt(0)")
        for o in refill(kindB): a(o)
        if 8192 - dAB: a(f"s_add_u32 s{S_GOFF}, s{S_GOFF}, {8192 - dAB}")
        for o in adv_rd(): a(o)
        a(f"s_mov_b64 s[{S_FIRST}:{S_FIRST+1}], 0")
        a(f"s_add_u32 s{S_CNT}, s{S_CNT}, 1")
        a(f"s_cmp_lt_u32 s{S_CNT}, 16")
        a(f"s_cbranch_scc1 L_A{sfx}")
    versions = [(C.NS, "a")] if C.NS2 is None else [(C.NS, "a"), (C.NS2, "b")]
    if C.NS2 is None:
        a_phase(C.NS, "a")
    else:
        if C.xcc:
            a("s_getreg_b32 s6, hwreg(HW_REG_XCC_ID)")
            a("s_and_b32 s6, s6, 1")
        else:
            a("s_and_b32 s6, s2, 1")
        a("s_cmp_eq_u32 s6, 1")
        a("s_cbranch_scc1 L_Avb")
        a_phase(C.NS, "a")
        a("s_branch L_Adone")
        a.label("L_Avb")
        a_phase(C.NS2, "b")
        a.label("L_Adone")
    st()
    V_OW = 9; V_DO = 10; V_OA = 13; V_BA = 14
    u0, u1, u2 = 100, 101, 102
    a(f"v_lshlrev_b32 v{V_OW}, 4, v{V_LANE}")
    a(f"v_add_u32 v{V_BA}, 0, v{V_OW}")
    a(f"v_add_u32 v{V_OW}, s{S_WR}, v{V_OW}")
    a("s_mov_b32 s6, 0x2aaaaaab")
    for i in range(3):
        a(f"v_add_u32 v{u0}, {64*i}, v{V_LANE}")
        a(f"v_mul_hi_u32 v{u1}, v{u0}, s6")
        a(f"v_mul_u32_u24 v{u2}, 6, v{u1}")
        a(f"v_sub_u32 v{u2}, v{u0}, v{u2}")
        a(f"v_mul_u32_u24 v{u1}, 1152, v{u1}")
        a(f"v_lshl_add_u32 v{V_DO+i}, v{u2}, 4, v{u1}")
    a(f"v_lshrrev_b32 v{u0}, 4, v{V_LANE}")
    a(f"v_bfe_u32 v{u1}, v{V_LANE}, 2, 2")
    a(f"v_lshl_add_u32 v{u0}, v{u0}, 2, v{u1}")
    a(f"v_mul_u32_u24 v{u0}, 96, v{u0}")
    a(f"v_and_b32 v{u1}, 3, v{V_LANE}")
    a(f"v_lshl_add_u32 v{u0}, v{u1}, 3, v{u0}")
    a(f"s_add_u32 s6, s{S_WR}, 28672")
    a(f"v_add_u32 v{V_OA}, s6, v{u0}")
    a(f"s_mul_i32 s6, s{P+6}, {512*1152}")
    a(f"s_mul_i32 s7, s{S_WAVE}, 288")
    a(f"s_add_u32 s6, s6, s7")
    a(f"s_sub_u32 s7, {512*1152}, s7")
    srd(SRD_WO, WO, "s6", 0, "s7")
    a(f"s_mov_b32 s{S_OO}, 0")
    a("s_waitcnt vmcnt(0)")
    def dma_wo(pr):
        kap, gam = divmod(pr, 3) if not C.outg else (pr, 0)
        return [([f"s_add_u32 m0, s{S_WR}, {28672 + (pr % 4)*3072 + i*1024}"] + ([f"s_add_u32 s{S_T}, s{S_OO}, {kap*32*1152 + gam*96}"] if i == 0 else ["s_nop 0"]),
                 f"buffer_load_dwordx4 v{V_DO+i}, s[{SRD_WO}:{SRD_WO+3}], s{S_T} offen lds", ("wo", pr)) for i in range(3)]
    tr.vm = []
    for pi in range(4):
        for it in dma_wo(pi): emit_item(it)
    for jq in range(7):
        for o in xlane("v_add_f32", V_L + jq, V_T): a(o)
        a(f"v_rcp_f32 v{V_L+jq}, v{V_L+jq}")
        for jp in range(4):
            b = 32 + ((jq*4 + jp) % 4)*16
            for k in range(4):
                a(f"v_accvgpr_read_b32 v{b+k}, a{oacc(2*jp, jq)+k}")
                a(f"v_accvgpr_read_b32 v{b+4+k}, a{oacc(2*jp+1, jq)+k}")
            for k in range(8): a(f"v_mul_f32 v{b+k}, v{b+k}, v{V_L+jq}")
            for k in range(4): a(f"v_cvt_pk_bf16_f32 v{b+8+k}, v{b+2*k}, v{b+2*k+1}")
            a(f"ds_write_b128 v{V_OW}, {vr(b+8, 4)} offset:{(jq*4 + jp)*1024}")
    a(f"s_lshl_b32 s6, s{P+2}, 4")
    a(f"s_add_u32 s6, s6, s{P+4}")
    a(f"s_lshl_b32 s6, s6, 3")
    a(f"s_add_u32 s6, s6, s{P+6}")
    a(f"s_lshl_b32 s6, s6, 2")
    a(f"s_add_u32 s6, s6, s{S_WAVE}")
    if C.outg:
        a(f"s_mul_i32 s6, s6, 33792")
        srd(SRD_WS, WS, "s6", 0, 33792)
    else:
        a(f"s_lshl_b32 s6, s6, 15")
        srd(SRD_WS, WS, "s6", 0, 32768)
    a("s_waitcnt lgkmcnt(0)")
    a("s_barrier")
    st()
    if C.outg:
        BF = [32, 60]; ACCS = [88, 172]; ABA = 0; NBO = 4
        S_BH, S_BN, S_ON = 61, 62, 63
        V_L16 = V_BA + 2
        a(f"v_mov_b32 v{V_L16}, v{V_BA}")
        def bread(kl, jq):
            reg = V_BA if kl < 4 else V_BA + 1
            tr.ds(f"ds_read_b128 {vr(BF[kl%2] + 4*jq, 4)}, v{reg} offset:{(jq*4 + kl % 4)*1024}", ("B", kl))
        def aread(tile, k):
            pi, cl = divmod(tile, 3)
            tr.ds(f"ds_read_b64_tr_b16 {ar(ABA + 4*(tile % NBO) + 2*k, 2)}, v{V_OA} offset:{(pi % 4)*3072 + cl*32 + k*1536}", ("A", tile))
        def dma_wo2(pr):
            base = S_OO if pr < 4 else S_ON
            kl = pr % 4
            return [([f"s_add_u32 m0, s{S_WR}, {28672 + kl*3072 + i*1024}"] + ([f"s_add_u32 s{S_T}, s{base}, {kl*32*1152}"] if i == 0 else []),
                     f"buffer_load_dwordx4 v{V_DO+i}, s[{SRD_WO}:{SRD_WO+3}], s{S_T} offen lds", ("wo", pr)) for i in range(3)]
        vm_entry_o = [("wo", p) for p in range(4) for _ in range(3)]
        def body(gam, first, last, fillers=None):
            AC = ACCS[gam % 2]
            tr.lds = [("A", t_) for t_ in range(1, AH) for _ in range(2)]
            tr.vm = list(vm_entry_o)
            S = Sched(tr)
            NT = 12
            for tile in range(NT):
                kl, cl = divmod(tile, 3)
                for jq in range(7):
                    d = vr(AC + (cl*7 + jq)*4, 4)
                    cop = "0" if (first and kl == 0) else d
                    S.mfma(f"{MF} {d}, {ar(ABA + 4*(tile % NBO), 4)}, {vr(BF[kl%2] + 4*jq, 4)}, {cop}")
            for tile in range(NT):
                kl, cl = divmod(tile, 3)
                g0 = tile*7
                nt_ = tile + 1
                if not (last and nt_ == NT):
                    need = [("A", nt_)] + ([("B", nt_ // 3)] if nt_ % 3 == 0 else [])
                    S.at(g0 + 6, (lambda need=need: tr.wait_lds(*need)))
                nx = tile + AH
                if not (last and nx >= NT):
                    if nx % 3 == 0: S.at(g0, (lambda nx=nx: tr.wait_vm(("wo", nx // 3))))
                    S.at(g0 + 1, (lambda nx=nx: aread(nx, 0)))
                    S.at(g0 + 2, (lambda nx=nx: aread(nx, 1)))
                if cl == 2 and not last:
                    for k, it in enumerate(dma_wo2(kl + 4)):
                        S.at(g0 + 3 + k, (lambda it=it: emit_item(it)), cost=(8 if k == 0 else 4))
                if cl == 0 and not (last and kl == 3):
                    for jq in range(7):
                        S.at(g0 + 3 + (jq % 4) + (jq // 4)*7, (lambda kl=kl, jq=jq: bread(kl + 1, jq)))
            if fillers:
                for o in fillers: S.fill(o, ready=2)
            S.emit()
        def adv(gam_next_wrap):
            pass
        def set_bases():
            a(f"v_add_u32 v{V_BA}, s{S_BH}, v{V_L16}")
            a(f"v_add_u32 v{V_BA+1}, s{S_BN}, v{V_L16}")
        def store_ops(gam):
            AC = ACCS[gam % 2]
            ops = []
            for i in range(11):
                b = 20 + 0
                d = (2 if i % 2 == 0 else 6)
                t0_ = AC + (2*i)*4
                ops.append(f"v_cvt_pk_bf16_f32 v{d}, v{t0_}, v{t0_+1}")
                ops.append(f"v_cvt_pk_bf16_f32 v{d+1}, v{t0_+2}, v{t0_+3}")
                if i < 10:
                    ops.append(f"v_cvt_pk_bf16_f32 v{d+2}, v{t0_+4}, v{t0_+5}")
                    ops.append(f"v_cvt_pk_bf16_f32 v{d+3}, v{t0_+6}, v{t0_+7}")
                else:
                    ops.append(f"v_mov_b32 v{d+2}, 0"); ops.append(f"v_mov_b32 v{d+3}, 0")
                sl = gam*11 + i
                ops.append(f"s_mov_b32 s{S_T2}, {(sl // 4)*4096}")
                ops.append(f"buffer_store_dwordx4 {vr(d, 4)}, v1, s[{SRD_WS}:{SRD_WS+3}], s{S_T2} offen offset:{(sl % 4)*1024}{C.fst if C.fuse else C.st_flags}")
            return ops
        a(f"v_lshlrev_b32 v1, 4, v{V_LANE}")
        a(f"s_mov_b32 s{S_BH}, 0")
        a(f"s_mov_b32 s{S_BN}, {WR}")
        a(f"s_mov_b32 s{S_OO}, 0")
        a(f"s_mov_b32 s{S_ON}, {128*1152}")
        set_bases()
        tr.lds = []
        for jq in range(7): bread(0, jq)
        a("s_waitcnt vmcnt(9)")
        for tile in range(AH):
            aread(tile, 0); aread(tile, 1)
        a("s_waitcnt lgkmcnt(0)")
        def advance(gam, hh_static=None):
            a(f"s_mov_b32 s{S_BH}, s{S_BN}")
            a(f"s_mov_b32 s{S_OO}, s{S_ON}")
            a(f"s_add_u32 s{S_BN}, s{S_BN}, {WR}")
            a(f"s_add_u32 s{S_ON}, s{S_ON}, {128*1152}")
            a(f"s_cmp_eq_u32 s{S_BN}, {4*WR}")
            a(f"s_cselect_b32 s{S_BN}, 0, s{S_BN}")
            a(f"s_cselect_b32 s{S_ON}, {(gam+1)*96}, s{S_ON}")
            set_bases()
        for gam in range(3):
            fl = store_ops(gam - 1) if gam else None
            body(gam, True, False, fl)
            advance(gam)
            a(f"s_mov_b32 s{S_CNT}, 0")
            nloop = 3 if gam < 2 else 2
            a.label(f"L_O{gam}")
            body(gam, False, False)
            advance(gam)
            a(f"s_add_u32 s{S_CNT}, s{S_CNT}, 1")
            a(f"s_cmp_lt_u32 s{S_CNT}, {nloop}")
            a(f"s_cbranch_scc1 L_O{gam}")
            if gam == 2:
                body(gam, False, True)
        st()
        a("s_nop 7"); a("s_nop 7")
        for o in store_ops(2): a(o)
    else:
        BF = [32, 60]; AB = 88; NBO = 4
        def oa(ct, jq): return (ct*7 + jq)*4
        def bread(kl, jq):
            reg = V_BA if kl < 4 else V_BA + 1
            tr.ds(f"ds_read_b128 {vr(BF[kl%2] + 4*jq, 4)}, v{reg} offset:{(jq*4 + kl % 4)*1024}", ("B", kl))
        def aread(tile, k):
            pi, cl = divmod(tile, 3)
            tr.ds(f"ds_read_b64_tr_b16 {vr(AB + 4*(tile % NBO) + 2*k, 2)}, v{V_OA} offset:{(pi % 4)*3072 + cl*32 + k*1536}", ("A", tile))
        vm_entry_o = [("wo", p) for p in range(4) for _ in range(3)]
        def out_body(first, last, extra_fill=None):
            tr.lds = [("A", t_) for t_ in range(1, AH) for _ in range(2)]
            tr.vm = list(vm_entry_o)
            S = Sched(tr)
            NT = 36
            for tile in range(NT):
                kl, ct = divmod(tile, 9)
                for jq in range(7):
                    cop = "0" if (first and kl == 0) else ar(oa(ct, jq), 4)
                    S.mfma(f"{MF} {ar(oa(ct, jq), 4)}, {vr(AB + 4*(tile % NBO), 4)}, {vr(BF[kl%2] + 4*jq, 4)}, {cop}")
            for tile in range(NT):
                kl, ct = divmod(tile, 9)
                g0 = tile*7
                nt_ = tile + 1
                if not (last and nt_ == NT):
                    need = [("A", nt_)] + ([("B", nt_ // 9)] if nt_ % 9 == 0 else [])
                    S.at(g0 + 6, (lambda need=need: tr.wait_lds(*need)))
                nx = tile + AH
                if not (last and nx >= NT):
                    if nx % 3 == 0: S.at(g0, (lambda nx=nx: tr.wait_vm(("wo", nx // 3))))
                    S.at(g0 + 1, (lambda nx=nx: aread(nx, 0)))
                    S.at(g0 + 2, (lambda nx=nx: aread(nx, 1)))
                if tile % 3 == 2:
                    pi = tile // 3
                    if not (last and pi + 4 >= 12):
                        for k, it in enumerate(dma_wo(pi + 4)):
                            S.at(g0 + 3 + k, (lambda it=it: emit_item(it)), cost=12)
                if ct == 4 and not (last and kl == 3):
                    for jq in range(7):
                        S.at(g0 + 3 + (jq % 4) + (jq // 4)*7, (lambda kl=kl, jq=jq: bread(kl + 1, jq)))
            if extra_fill: extra_fill(S)
            S.emit()
        a(f"v_add_u32 v{V_BA+1}, {WR}, v{V_BA}")
        tr.lds = []
        for jq in range(7): bread(0, jq)
        a("s_waitcnt vmcnt(9)")
        for tile in range(AH):
            aread(tile, 0); aread(tile, 1)
        a("s_waitcnt lgkmcnt(0)")
        def adv_head():
            a(f"s_add_u32 s{S_OO}, s{S_OO}, {128*1152}")
            a(f"v_add_u32 v{V_BA}, {WR}, v{V_BA}")
            a(f"v_add_u32 v{V_BA+1}, {WR}, v{V_BA+1}")
        out_body(True, False)
        adv_head()
        a(f"s_mov_b32 s{S_CNT}, 0")
        a.label("L_O")
        out_body(False, False)
        adv_head()
        a(f"s_add_u32 s{S_CNT}, s{S_CNT}, 1")
        a(f"s_cmp_lt_u32 s{S_CNT}, 2")
        a("s_cbranch_scc1 L_O")
        a(f"v_lshlrev_b32 v1, 4, v{V_LANE}")
        done_pairs = [0]
        stf = C.fst if C.fuse else C.st_flags
        def store_pair(i):
            b = 104 + (i % 4)*16
            ops = []
            nt_ = 2 if i < 31 else 1
            for k in range(4*nt_): ops.append(f"v_accvgpr_read_b32 v{b+k}, a{8*i+k}")
            for k in range(2*nt_): ops.append(f"v_cvt_pk_bf16_f32 v{b+8+k}, v{b+2*k}, v{b+2*k+1}")
            if nt_ == 1:
                ops.append(f"v_mov_b32 v{b+10}, 0"); ops.append(f"v_mov_b32 v{b+11}, 0")
            ops.append(f"s_mov_b32 s{S_T2}, {(i // 4)*4096}")
            ops.append(f"buffer_store_dwordx4 {vr(b+8, 4)}, v1, s[{SRD_WS}:{SRD_WS+3}], s{S_T2} offen offset:{(i % 4)*1024}{stf}")
            return ops
        tailst = []
        def fill_stores(S):
            for i in range(32):
                tl = min(2*i + 1, 62)
                ct = tl // 7
                rdy = (27 + ct)*7 + (tl % 7) + 3
                for o in store_pair(i):
                    if rdy < len(S.M) - 1: S.fill(o, ready=rdy)
                    else: tailst.append(o)
        out_body(False, True, fill_stores)
        st()
        a("s_nop 7"); a("s_nop 7")
        for o in tailst: a(o)
    if C.fuse:
        OUTP, DBG = 88, 90
        a(f"s_load_dwordx2 s[{OUTP}:{OUTP+1}], s[0:1], 80")
        a(f"s_load_dwordx2 s[{DBG}:{DBG+1}], s[0:1], 88")
        a(f"s_lshl_b32 s{S_T}, s{P+2}, 4")
        a(f"s_add_u32 s{S_T}, s{S_T}, s{P+4}")
        a(f"s_lshl_b32 s{S_T2}, s{S_T}, 2")
        if C.stamp: a("s_memrealtime s[96:97]")
        a("s_waitcnt vmcnt(0) lgkmcnt(0)")
        if C.stamp: a("s_memrealtime s[98:99]")
        a("s_barrier")
        a(f"s_cmp_eq_u32 s{S_WAVE}, 0")
        a("s_cbranch_scc0 L_wait_done")
        a(f"v_mov_b32 v2, s{S_T2}")
        a("v_mov_b32 v3, 1")
        a(f"v_cmp_eq_u32 vcc, 0, v{V_LANE}")
        a("s_and_saveexec_b64 s[4:5], vcc")
        a(f"global_atomic_add v2, v3, s[{DBG}:{DBG+1}] sc1")
        a.label("L_poll")
        a(f"global_load_dword v4, v2, s[{DBG}:{DBG+1}] sc1")
        a("s_waitcnt vmcnt(0)")
        a("v_cmp_gt_u32 vcc, 8, v4")
        a("s_cbranch_vccz L_poll_done")
        a("s_sleep 2")
        a("s_branch L_poll")
        a.label("L_poll_done")
        a("s_mov_b64 exec, s[4:5]")
        a.label("L_wait_done")
        a("s_barrier")
        if C.stamp: a("s_memrealtime s[60:61]")
        if C.outg:
            RS = 92
            a(f"s_mov_b32 s{RS}, s{WS}")
            a(f"s_and_b32 s{RS+1}, s{WS+1}, 0xffff")
            a(f"s_mov_b32 s{RS+2}, {1024*33792}")
            a(f"s_mov_b32 s{RS+3}, 0x20000")
            OS = 8
            a(f"s_mov_b32 s{OS}, s{OUTP}")
            a(f"s_and_b32 s{OS+1}, s{OUTP+1}, 0xffff")
            a(f"s_mov_b32 s{OS+2}, {16*112*1152*2}")
            a(f"s_mov_b32 s{OS+3}, 0x20000")
            a(f"s_lshl_b32 s12, s{P+6}, 2")
            a(f"s_add_u32 s12, s12, s{S_WAVE}")
            a(f"v_lshlrev_b32 v5, 4, v{V_LANE}")
            a(f"s_mul_i32 s15, s{S_T}, {32*33792}")
            NTK = 5
            for k in range(NTK):
                a(f"s_add_u32 s13, s12, {32*k}")
                a(f"s_mul_i32 s14, s13, {(2**16 + 32)//33}")
                a("s_lshr_b32 s14, s14, 16")
                a("s_mul_i32 s16, s14, 33")
                a("s_sub_u32 s16, s13, s16")
                a(f"s_mul_i32 s17, s14, 33792")
                a("s_lshl_b32 s18, s16, 10")
                a("s_add_u32 s17, s17, s18")
                a("s_add_u32 s17, s17, s15")
                a("s_cmp_ge_u32 s13, 132")
                a("s_cselect_b32 s17, 0x7f000000, s17")
                a(f"s_mov_b32 s{36+2*k}, s14") if False else None
                a(f"v_writelane_b32 v10, s14, {k}")
                a(f"v_writelane_b32 v10, s16, {8+k}")
                a(f"v_writelane_b32 v10, s13, {16+k}")
                for p_ in range(8):
                    r0 = 32 + (k*8 + p_)*4
                    a(f"buffer_load_dwordx4 v[{r0}:{r0+3}], v5, s[{RS}:{RS+3}], s17 offen{C.fld}")
                    if p_ < 7: a(f"s_add_u32 s17, s17, {4*33792}")
            a(f"v_and_b32 v3, 15, v{V_LANE}")
            a(f"v_lshrrev_b32 v4, 4, v{V_LANE}")
            a(f"s_mul_i32 s18, s{P+4}, 112")
            a("v_add_u32 v6, s18, v3")
            a("s_movk_i32 s19, 2304")
            a("v_mul_lo_u32 v6, v6, s19")
            a("v_lshl_add_u32 v6, v4, 3, v6")
            a(f"s_mul_i32 s19, s{P+2}, 1152")
            for k in range(NTK):
                a(f"s_waitcnt vmcnt({(NTK-1-k)*8 + 2*k})")
                acc = 200 + (k % 2)*8
                for p_ in range(8):
                    for q in range(4):
                        src = 32 + (k*8 + p_)*4 + q
                        if p_ == 0:
                            a(f"v_lshlrev_b32 v{acc+2*q}, 16, v{src}")
                            a(f"v_and_b32 v{acc+2*q+1}, 0xffff0000, v{src}")
                        else:
                            a(f"v_lshlrev_b32 v8, 16, v{src}")
                            a(f"v_and_b32 v9, 0xffff0000, v{src}")
                            a(f"v_add_f32 v{acc+2*q}, v{acc+2*q}, v8")
                            a(f"v_add_f32 v{acc+2*q+1}, v{acc+2*q+1}, v9")
                o_ = 220 + (k % 2)*4
                for q in range(4): a(f"v_cvt_pk_bf16_f32 v{o_+q}, v{acc+2*q}, v{acc+2*q+1}")
                a(f"v_readlane_b32 s14, v10, {k}")
                a(f"v_readlane_b32 s16, v10, {8+k}")
                a(f"v_readlane_b32 s13, v10, {16+k}")
                a("s_nop 3")
                a(f"s_mul_i32 s20, s16, {(2**16 + 10)//11}")
                a("s_lshr_b32 s20, s20, 16")
                a("s_mul_i32 s21, s20, 11")
                a("s_sub_u32 s21, s16, s21")
                a("s_mul_i32 s20, s20, 96")
                a("s_mul_i32 s22, s14, 288")
                a("s_add_u32 s20, s20, s22")
                a("s_add_u32 s20, s20, s19")
                for h in range(2):
                    a("s_lshl_b32 s22, s21, 1")
                    if h: a("s_add_u32 s22, s22, 1")
                    a(f"s_mul_i32 s23, s22, {(2**16 + 6)//7}")
                    a("s_lshr_b32 s23, s23, 16")
                    a("s_mul_i32 s24, s23, 7")
                    a("s_sub_u32 s24, s22, s24")
                    a(f"s_mul_i32 s24, s24, {16*2304}")
                    a("s_lshl_b32 s23, s23, 5")
                    a("s_add_u32 s24, s24, s23")
                    a("s_add_u32 s24, s24, s20")
                    a("s_cmp_eq_u32 s22, 21")
                    a("s_cselect_b32 s24, 0x7f000000, s24")
                    a("s_cmp_ge_u32 s13, 132")
                    a("s_cselect_b32 s24, 0x7f000000, s24")
                    a(f"buffer_store_dwordx2 v[{o_+2*h}:{o_+2*h+1}], v6, s[{OS}:{OS+3}], s24 offen")
        else:
            RS = 92
            a(f"s_mov_b32 s{RS}, s{WS}")
            a(f"s_and_b32 s{RS+1}, s{WS+1}, 0xffff")
            a(f"s_mov_b32 s{RS+2}, {256*131072}")
            a(f"s_mov_b32 s{RS+3}, 0x20000")
            OS = 8
            a(f"s_mov_b32 s{OS}, s{OUTP}")
            a(f"s_and_b32 s{OS+1}, s{OUTP+1}, 0xffff")
            a(f"s_mov_b32 s{OS+2}, {16*112*1152*2}")
            a(f"s_mov_b32 s{OS+3}, 0x20000")
            a(f"s_lshl_b32 s12, s{P+6}, 2")
            a(f"s_add_u32 s12, s12, s{S_WAVE}")
            a(f"s_lshl_b32 s12, s12, 2")
            a(f"s_lshr_b32 s13, s12, 5")
            a(f"s_and_b32 s14, s12, 31")
            a(f"s_lshl_b32 s15, s{S_T}, 20")
            a(f"s_lshl_b32 s16, s13, 15")
            a(f"s_add_u32 s15, s15, s16")
            a(f"s_lshl_b32 s16, s14, 10")
            a(f"s_add_u32 s15, s15, s16")
            a(f"v_lshlrev_b32 v5, 4, v{V_LANE}")
            for p_ in range(8):
                for k in range(4):
                    r0 = 32 + (k*8 + p_)*4
                    a(f"buffer_load_dwordx4 v[{r0}:{r0+3}], v5, s[{RS}:{RS+3}], s15 offen offset:{k*1024}{C.fld}")
                if p_ < 7: a("s_add_u32 s15, s15, 131072")
            a(f"v_and_b32 v3, 15, v{V_LANE}")
            a(f"v_lshrrev_b32 v4, 4, v{V_LANE}")
            a(f"s_mul_i32 s18, s{P+4}, 112")
            a("v_add_u32 v6, s18, v3")
            a("s_movk_i32 s19, 2304")
            a("v_mul_lo_u32 v6, v6, s19")
            a("v_lshl_add_u32 v6, v4, 3, v6")
            a(f"s_mul_i32 s19, s{P+2}, 1152")
            a("s_mul_i32 s20, s13, 288")
            a("s_add_u32 s19, s19, s20")
            for k in range(4):
                pass
            a("s_waitcnt vmcnt(0)")
            if C.stamp: a("s_memrealtime s[62:63]")
            for k in range(4):
                acc = 160 + k*8
                for p_ in range(8):
                    for q in range(4):
                        src = 32 + (k*8 + p_)*4 + q
                        if p_ == 0:
                            a(f"v_lshlrev_b32 v{acc+2*q}, 16, v{src}")
                            a(f"v_and_b32 v{acc+2*q+1}, 0xffff0000, v{src}")
                        else:
                            a(f"v_lshlrev_b32 v8, 16, v{src}")
                            a(f"v_and_b32 v9, 0xffff0000, v{src}")
                            a(f"v_add_f32 v{acc+2*q}, v{acc+2*q}, v8")
                            a(f"v_add_f32 v{acc+2*q+1}, v{acc+2*q+1}, v9")
                for q in range(4): a(f"v_cvt_pk_bf16_f32 v{200+4*k+q}, v{acc+2*q}, v{acc+2*q+1}")
                for h in range(2):
                    a(f"s_add_u32 s21, s14, {k}")
                    a("s_lshl_b32 s22, s21, 1")
                    if h: a("s_add_u32 s22, s22, 1")
                    a(f"s_mul_i32 s23, s22, {(2**16 + 6)//7}")
                    a("s_lshr_b32 s23, s23, 16")
                    a("s_mul_i32 s24, s23, 7")
                    a("s_sub_u32 s24, s22, s24")
                    a(f"s_mul_i32 s24, s24, {16*2304}")
                    a("s_lshl_b32 s23, s23, 5")
                    a("s_add_u32 s24, s24, s23")
                    a("s_add_u32 s24, s24, s19")
                    a("s_cmp_eq_u32 s22, 63")
                    a("s_cselect_b32 s24, 0x7f000000, s24")
                    a(f"buffer_store_dwordx2 v[{200+4*k+2*h}:{201+4*k+2*h}], v6, s[{OS}:{OS+3}], s24 offen")
    if C.stamp:
        st()
        a("s_waitcnt vmcnt(0)")
        st()
        a("s_memrealtime s[68:69]")
        a("s_waitcnt lgkmcnt(0)")
        a(f"v_writelane_b32 v{V_STAMP}, s68, 63")
        a(f"v_writelane_b32 v{V_STAMP}, s70, 62")
        if not C.fuse:
            for k in range(5): a(f"v_writelane_b32 v{V_STAMP}, s{88+2*k}, {48+k}")
        else:
            for k, r_ in enumerate((96, 98, 60, 62)): a(f"v_writelane_b32 v{V_STAMP}, s{r_}, {48+k}")
        a(f"s_mov_b32 s{SRD_WS}, s{WS}")
        a(f"s_and_b32 s{SRD_WS+1}, s{WS+1}, 0xffff")
        a(f"s_mov_b32 s{SRD_WS+2}, 0x4000000")
        a(f"s_lshl_b32 s{S_T}, s2, 2")
        a(f"s_add_u32 s{S_T}, s{S_T}, s{S_WAVE}")
        a(f"s_lshl_b32 s{S_T}, s{S_T}, 8")
        a(f"s_add_u32 s{S_T}, s{S_T}, {40<<20}")
        a(f"v_lshlrev_b32 v1, 2, v{V_LANE}")
        a(f"buffer_store_dword v{V_STAMP}, v1, s[{SRD_WS}:{SRD_WS+3}], s{S_T} offen")
    a("s_endpgm")
    for _, sfx in versions:
        for jq in range(7):
            Sb = sbuf(jq)
            a.label(f"L_rare{sfx}_{jq}")
            a("s_nop 7")
            d, tm = V_T, V_T + 1
            a(f"v_max3_f32 v{d}, v{Sb}, v{Sb+1}, v{Sb+2}")
            a(f"v_max3_f32 v{tm}, v{Sb+3}, v{Sb+4}, v{Sb+5}")
            a(f"v_max3_f32 v{d}, v{d}, v{Sb+6}, v{Sb+7}")
            a(f"v_max_f32 v{d}, v{d}, v{tm}")
            for o in xlane("v_max_f32", d, tm): a(o)
            a(f"s_cmp_eq_u32 s{S_CNT}, 0")
            a(f"s_cbranch_scc1 L_rare{sfx}_{jq}_first")
            a(f"v_max_f32 v{d}, 0, v{d}")
            a(f"v_sub_f32 v{tm}, 0, v{d}") if C.prescale else a(f"v_mul_f32 v{tm}, s{S_NSC}, v{d}")
            a(f"v_exp_f32 v{tm}, v{tm}")
            a("s_nop 0")
            for T in range(8):
                for k in range(4):
                    a(f"v_accvgpr_read_b32 v{V_T+2}, a{oacc(T, jq)+k}")
                    a(f"v_mul_f32 v{V_T+2}, v{V_T+2}, v{tm}")
                    a(f"v_accvgpr_write_b32 a{oacc(T, jq)+k}, v{V_T+2}")
            a(f"v_mul_f32 v{V_L+jq}, v{V_L+jq}, v{tm}")
            a.label(f"L_rare{sfx}_{jq}_first")
            for k in range(8): a(f"v_sub_f32 v{Sb+k}, v{Sb+k}, v{d}")
            for k in range(4): a(f"v_sub_f32 v{NEG+4*jq+k}, v{NEG+4*jq+k}, v{d}")
            for ins, c_ in softmax(jq): a(ins)
            a("s_nop 1")
            a(f"s_branch L_rare{sfx}_{jq}_ret")
    a.label("L_exit")
    a("s_endpgm")
    a.label("L_code_end")
    return a.text()

def gen_reduce2():
    a = Asm()
    a("s_cmp_ge_u32 s2, 1056")
    a("s_cbranch_scc1 R_exit")
    a("s_load_dwordx2 s[4:5], s[0:1], 96")
    a("s_load_dwordx2 s[6:7], s[0:1], 80")
    a("v_lshrrev_b32 v1, 6, v0")
    a("v_and_b32 v2, 63, v0")
    a("v_readfirstlane_b32 s8, v1")
    a("s_lshl_b32 s9, s2, 2")
    a("s_add_u32 s9, s9, s8")
    a(f"s_mul_hi_u32 s11, s9, {(2**32 + 32)//33}")
    a("s_mul_i32 s12, s11, 33")
    a("s_sub_u32 s12, s9, s12")
    a("s_and_b32 s13, s11, 3")
    a("s_lshr_b32 s14, s11, 2")
    a(f"s_mul_i32 s15, s14, {32*33792}")
    a(f"s_mul_i32 s16, s13, 33792")
    a("s_add_u32 s15, s15, s16")
    a("s_lshl_b32 s16, s12, 10")
    a("s_add_u32 s15, s15, s16")
    a("s_waitcnt lgkmcnt(0)")
    a("s_mov_b32 s20, s4")
    a("s_and_b32 s21, s5, 0xffff")
    a(f"s_mov_b32 s22, {1024*33792}")
    a("s_mov_b32 s23, 0x20000")
    a("s_mov_b32 s24, s6")
    a("s_and_b32 s25, s7, 0xffff")
    a(f"s_mov_b32 s26, {16*112*1152*2}")
    a("s_mov_b32 s27, 0x20000")
    a("v_lshlrev_b32 v5, 4, v2")
    for p in range(8):
        a(f"buffer_load_dwordx4 v[{16+4*p}:{19+4*p}], v5, s[20:23], s15 offen")
        if p < 7: a(f"s_add_u32 s15, s15, {4*33792}")
    a("v_and_b32 v3, 15, v2")
    a("v_lshrrev_b32 v4, 4, v2")
    a("s_and_b32 s18, s14, 15")
    a("s_lshr_b32 s19, s14, 4")
    a("s_mul_i32 s18, s18, 112")
    a("s_movk_i32 s28, 2304")
    a("v_add_u32 v6, s18, v3")
    a("v_mul_lo_u32 v6, v6, s28")
    a("v_lshlrev_b32 v4, 3, v4")
    a("v_add_u32 v6, v6, v4")
    a("s_mul_i32 s19, s19, 1152")
    a("s_mul_i32 s29, s13, 288")
    a("s_add_u32 s19, s19, s29")
    a(f"s_mul_i32 s35, s12, {(2**16 + 10)//11}")
    a("s_lshr_b32 s35, s35, 16")
    a("s_mul_i32 s36, s35, 11")
    a("s_sub_u32 s36, s12, s36")
    a("s_mul_i32 s35, s35, 96")
    a("s_add_u32 s19, s19, s35")
    for k in range(2):
        a(f"s_lshl_b32 s30, s36, 1")
        if k: a("s_add_u32 s30, s30, 1")
        a(f"s_mul_i32 s31, s30, {(2**16 + 6)//7}")
        a("s_lshr_b32 s31, s31, 16")
        a("s_mul_i32 s32, s31, 7")
        a("s_sub_u32 s32, s30, s32")
        a(f"s_mul_i32 s32, s32, {16*2304}")
        a("s_lshl_b32 s31, s31, 5")
        a("s_add_u32 s32, s32, s31")
        a(f"s_add_u32 s{33+k}, s32, s19")
    a("s_cmp_eq_u32 s36, 10")
    a("s_cselect_b32 s34, 0x7f000000, s34")
    for p in range(8):
        a(f"s_waitcnt vmcnt({7-p})")
        for k in range(4):
            src = 16 + 4*p + k
            if p == 0:
                a(f"v_lshlrev_b32 v{48+2*k}, 16, v{src}")
                a(f"v_and_b32 v{49+2*k}, 0xffff0000, v{src}")
            else:
                a(f"v_lshlrev_b32 v8, 16, v{src}")
                a(f"v_and_b32 v9, 0xffff0000, v{src}")
                a(f"v_add_f32 v{48+2*k}, v{48+2*k}, v8")
                a(f"v_add_f32 v{49+2*k}, v{49+2*k}, v9")
    for k in range(4): a(f"v_cvt_pk_bf16_f32 v{56+k}, v{48+2*k}, v{49+2*k}")
    a("buffer_store_dwordx2 v[56:57], v6, s[24:27], s33 offen")
    a("buffer_store_dwordx2 v[58:59], v6, s[24:27], s34 offen")
    a.label("R_exit")
    a("s_endpgm")
    return a.text()

def generate(path):
    body = gen_main()
    red = gen_reduce2() if C.outg else gen_reduce()
    if C.fuse:
        txt = make_file([(KN, 256, 256, 163840)], [(KN, body, 512, 102, 256)])
        open(path, "w").write(txt)
        return
    ll = [("attn_main_kernel", 256, 256, 163840), ("attn_reduce_kernel", 1056 if C.outg else 1024, 256, 0)]
    if C.only == "main": ll = ll[:1]
    txt = make_file(ll, [("attn_main_kernel", body, 512, 100, 256), ("attn_reduce_kernel", red, 64, 40, 64)])
    open(path, "w").write(txt)

if __name__ == "__main__":
    out = sys.argv[1] if len(sys.argv) > 1 else "w3.s"
    for kv in sys.argv[2:]:
        k, v = kv.split("=")
        setattr(C, k, eval(v))
    generate(out)
```

```python
import sys, struct, math
from asmlib import *
from gen_w import Tracker, Sched, xlane, vr, ar, f2u, MF, gen_reduce as gen_reduce0
def gen_reduce():
    t = gen_reduce0()
    return t.replace("s15 offen", "s15 offen" + C.rld)

class Cfg:
    nt_kv = True
    THR = 0x47800000
    stamp = False
    st_flags = ""
    only = None
    AH = 2
    nobar = False
    vrot = True
    vgap = 1
    rld = ""
    prescale = True
    outg = False
    NS = 4
    NS2 = None
    xcc = False
    fst = " sc0 sc1"
    fld = " sc0 sc1"
    fuse = False
    kvgap = 10
    codepf = False
    qnt = ""
    nodma = False
    noxread = False
C = Cfg()

WR = 40960
S_WAVE = 3
SRD_X = 8; SRD_WQ = 12; SRD_K = 16; SRD_V = 20; SRD_WO = 24; SRD_WS = 28
S_WR = 32; S_T = 33; S_T2 = 34; S_CNT = 35
S_RD = 36; S_GOFF = 37
S_THR = 38; S_SCALE = 39; S_NSC = 40
S_QO = 41
S_FIRST = 42
S_WREND = 44
S_XO = 45
S_XLDS = 46
S_OO = 47
S_P = 48
WSRD = 84
S_XTOG = 60
V_LANE = 0
V_DK = 1; V_DV = 5; V_KL = 7; V_VL = 8
V_A = 9; V_T = 17; V_TS = 23; V_L = 24; V_STAMP = 31

def gen_main():
    a = Asm()
    tr = Tracker(a)
    P = S_P
    nt = " nt" if C.nt_kv else ""
    stamp_i = [0]
    def st():
        if C.stamp:
            a("s_memtime s[64:65]")
            a("s_memrealtime s[66:67]")
            a("s_waitcnt lgkmcnt(0)")
            a(f"v_writelane_b32 v{V_STAMP}, s64, {stamp_i[0]}")
            a(f"v_writelane_b32 v{V_STAMP}, s66, {32 + stamp_i[0]}")
            tr.lds = []
        stamp_i[0] += 1
    X, K, V, WQ, WO, WS = 72, 74, 76, 78, 80, 82
    a("s_cmp_ge_u32 s2, 256")
    a("s_cbranch_scc1 L_exit")
    if C.codepf:
        a("s_getpc_b64 s[86:87]")
        a.label("L_pc")
        a("v_lshrrev_b32 v1, 6, v0")
        a("s_lshr_b32 s6, s2, 3")
        a("v_lshl_add_u32 v1, s6, 2, v1")
        a("v_mul_u32_u24 v2, 43691, v1")
        a("v_lshrrev_b32 v2, 18, v2")
        a("v_mul_u32_u24 v2, 6, v2")
        a("v_sub_u32 v1, v1, v2")
        a("v_lshlrev_b32 v1, 13, v1")
        a("v_and_b32 v2, 63, v0")
        a("v_lshl_add_u32 v1, v2, 7, v1")
        a("v_min_u32 v1, (L_code_end - L_pc - 4), v1")
        a("v_and_b32 v1, -4, v1")
        a("global_load_dword v23, v1, s[86:87]")
    a(f"s_and_b32 s{P+2}, s2, 1")
    a(f"s_mul_i32 s{P+7}, s{P+2}, 40")
    a(f"s_add_u32 s4, s0, s{P+7}")
    a("s_addc_u32 s5, s1, 0")
    a(f"s_load_dwordx2 s[{X}:{X+1}], s[4:5], 0")
    a(f"s_load_dwordx2 s[{WQ}:{WQ+1}], s[4:5], 24")
    a(f"s_load_dwordx2 s[{K}:{K+1}], s[4:5], 8")
    a(f"s_load_dwordx2 s[{V}:{V+1}], s[4:5], 16")
    a(f"s_load_dwordx2 s[{WO}:{WO+1}], s[4:5], 32")
    a(f"s_load_dwordx2 s[{WS}:{WS+1}], s[0:1], 96")
    if C.stamp: a("s_memrealtime s[70:71]")
    a(f"s_and_b32 s{P}, s2, 7")
    a(f"s_lshr_b32 s{P+1}, s2, 3")
    a(f"s_and_b32 s{P+5}, s{P+1}, 1")
    a(f"s_lshr_b32 s{P+3}, s{P}, 1")
    a(f"s_lshr_b32 s{P+4}, s{P+1}, 1")
    a(f"s_lshl_b32 s{P+6}, s{P+3}, 1")
    a(f"s_add_u32 s{P+6}, s{P+6}, s{P+5}")
    a("v_lshrrev_b32 v1, 6, v0")
    a(f"v_and_b32 v{V_LANE}, 63, v0")
    a(f"v_readfirstlane_b32 s{S_WAVE}, v1")
    L = V_LANE
    t0, t1, t2, t3, n, g, r, cc = 232, 233, 234, 235, 236, 237, 238, 239
    V_DQ = 9; V_DX = 13; V_XA = 14; V_QA = 15
    a(f"v_lshrrev_b32 v{t0}, 3, v{L}")
    a(f"v_and_b32 v{t1}, 7, v{L}")
    a(f"v_bfe_u32 v{t3}, v{L}, 4, 1")
    a(f"v_lshlrev_b32 v{t3}, 1, v{t3}")
    a(f"v_xor_b32 v{t3}, v{t3}, v{t1}")
    a(f"v_lshlrev_b32 v{t3}, 4, v{t3}")
    a(f"v_lshlrev_b32 v{t2}, 13, v{t0}")
    a(f"v_add_u32 v{V_DQ}, v{t2}, v{t3}")
    a(f"v_xor_b32 v{V_DQ+1}, 64, v{V_DQ}")
    a(f"v_add_u32 v{V_DQ+1}, {65536-1024}, v{V_DQ+1}")
    a(f"v_add_u32 v{V_DQ+2}, {2*(65536-1024)}, v{V_DQ}")
    a(f"v_add_u32 v{V_DQ+3}, {2*(65536-1024)}, v{V_DQ+1}")
    a(f"v_lshrrev_b32 v{g}, 4, v{L}")
    a(f"v_and_b32 v{cc}, 3, v{L}")
    a(f"v_lshrrev_b32 v{t0}, 2, v{L}")
    a(f"v_sub_u32 v{t1}, 0, v{g}")
    a(f"v_and_b32 v{t1}, 3, v{t1}")
    a(f"v_xor_b32 v{t1}, v{t1}, v{cc}")
    a(f"v_lshlrev_b32 v{t1}, 4, v{t1}")
    a(f"v_mul_u32_u24 v{t2}, 1152, v{t0}")
    a(f"v_add_u32 v{V_DX}, v{t2}, v{t1}")
    a(f"s_mul_i32 s{S_WR}, s{S_WAVE}, {WR}")
    a(f"s_mul_i32 s{S_XO}, s{S_WAVE}, {16*1152}")
    a(f"s_lshl_b32 s{S_XLDS}, s{S_WAVE}, 10")
    a(f"s_lshl_b32 s6, s{P+6}, 2")
    a(f"s_add_u32 s{P+8}, s6, s{S_WAVE}")
    a(f"s_mov_b32 s{S_QO}, 0")
    a("s_waitcnt lgkmcnt(0)")
    def srd(dst, ptr, off_lo, off_hi, size):
        a(f"s_add_u32 s{dst}, s{ptr}, {off_lo}")
        a(f"s_addc_u32 s{dst+1}, s{ptr+1}, {off_hi}")
        a(f"s_and_b32 s{dst+1}, s{dst+1}, 0xffff")
        a(f"s_mov_b32 s{dst+2}, {size}")
        a(f"s_mov_b32 s{dst+3}, 0x20000")
    if C.stamp: a("s_memrealtime s[88:89]")
    a(f"s_lshl_b32 s6, s{P+8}, 8")
    a(f"s_sub_u32 s7, {576*8192}, s6")
    srd(SRD_WQ, WQ, "s6", 0, "s7")
    a(f"s_mul_i32 s6, s{P+4}, 129024")
    srd(SRD_X, X, "s6", 0, 129024)
    XSL = [32768, WR + 32768]
    def dma_wq(ksr, h):
        return [(([f"s_add_u32 m0, s{S_WR}, {16384 + (ksr%2)*8192 + h*4096}",
                   f"s_add_u32 s{S_T}, s{S_QO}, {32*ksr*8192 + h*128}"] if p == 0 else []),
                 f"buffer_load_dwordx4 v{V_DQ + p}, s[{SRD_WQ}:{SRD_WQ+3}], s{S_T} offen offset:{p*1024}{C.qnt} lds", ("wq", ksr, h)) for p in range(4)]
    def dma_x(pr, par=0):
        return [([f"s_add_u32 m0, s{S_XLDS}, {32768 + par*2*WR + sub*WR + k*4096}",
                  f"s_add_u32 s{S_T}, s{S_XO}, {k*64*1152 + (2*pr + sub)*64}"],
                 f"buffer_load_dwordx4 v{V_DX}, s[{SRD_X}:{SRD_X+3}], s{S_T} offen{C.qnt} lds", ("x", pr)) for sub in range(2) for k in range(2)]
    def emit_item(it):
        for s_ in it[0]: tr(s_)
        tr.vmem(it[1], it[2])
    for it in dma_wq(0, 0) + dma_x(0) + dma_wq(0, 1) + dma_wq(1, 0) + dma_wq(1, 1) + dma_x(1, 1): emit_item(it)
    a(f"s_mov_b32 s{S_XTOG}, {2*WR}")
    if C.stamp: a("s_memrealtime s[90:91]")
    a(f"s_lshl_b32 s6, s{P+4}, 5")
    a(f"s_add_u32 s6, s6, s{P+8}")
    a(f"s_lshl_b32 s6, s6, 17")
    srd(SRD_K, K, "s6", 0, 131072)
    srd(SRD_V, V, "s6", 0, 131072)
    a(f"s_lshl_b32 s6, s{P+3}, 11")
    a(f"s_sub_u32 s7, {576*8192}, s6")
    srd(WSRD, WQ, "s6", 0, "s7")
    a(f"s_lshl_b32 s6, s{P+1}, 2")
    a(f"s_add_u32 s6, s6, s{S_WAVE}")
    a(f"s_mul_i32 s{P+9}, s6, 72")
    a(f"v_mov_b32 v{t1}, 0x7fffff00")
    a(f"v_cmp_gt_u32 vcc, 36, v{L}")
    for k in range(2):
        a(f"v_add_u32 v{t0}, s{P+9}, v{L}")
        if k: a(f"v_add_u32 v{t0}, 36, v{t0}")
        a(f"v_lshrrev_b32 v{t2}, 4, v{t0}")
        a(f"v_lshlrev_b32 v{t2}, 13, v{t2}")
        a(f"v_and_b32 v{t0}, 15, v{t0}")
        a(f"v_lshl_add_u32 v{t0}, v{t0}, 7, v{t2}")
        a(f"v_cndmask_b32 v{t0}, v{t1}, v{t0}, vcc")
        tr.vmem(f"buffer_load_dword v{V_TS}, v{t0}, s[{WSRD}:{WSRD+3}], 0 offen{C.qnt}", "warm")
    if C.stamp: a("s_memrealtime s[92:93]")
    if C.stamp: a(f"v_mov_b32 v{V_STAMP}, 0")
    a(f"v_and_b32 v{n}, 15, v{L}")
    a(f"v_bfe_u32 v{r}, v{L}, 2, 2")
    a(f"s_mov_b32 s{S_THR}, {C.THR:#x}")
    sc = math.log2(math.e) / math.sqrt(128.0)
    a(f"s_mov_b32 s{S_SCALE}, {f2u(sc):#x}")
    a(f"s_mov_b32 s{S_NSC}, {f2u(-sc):#x}")
    a(f"v_lshrrev_b32 v{t0}, 1, v{r}")
    a(f"v_and_b32 v{t1}, 1, v{g}")
    a(f"v_lshl_or_b32 v{t0}, v{t1}, 1, v{t0}")
    a(f"v_lshlrev_b32 v{t0}, 1, v{t0}")
    a(f"v_lshrrev_b32 v{t1}, 1, v{cc}")
    a(f"v_xor_b32 v{t0}, v{t0}, v{t1}")
    a(f"v_lshlrev_b32 v{t0}, 4, v{t0}")
    a(f"v_lshl_add_u32 v{t1}, v{g}, 3, v{r}")
    a(f"v_lshl_add_u32 v{t0}, v{t1}, 7, v{t0}")
    a(f"v_and_b32 v{t1}, 1, v{cc}")
    a(f"v_lshl_add_u32 v{t0}, v{t1}, 3, v{t0}")
    a(f"s_add_u32 s6, s{S_WR}, 16384")
    a(f"v_add_u32 v{t0}, s6, v{t0}")
    for Tl in range(4): a(f"v_xor_b32 v{V_QA+Tl}, {Tl*32}, v{t0}")
    a(f"v_lshrrev_b32 v{t0}, 2, v{n}")
    a(f"v_sub_u32 v{t0}, 0, v{t0}")
    a(f"v_and_b32 v{t0}, 3, v{t0}")
    a(f"v_xor_b32 v{t0}, v{t0}, v{g}")
    a(f"v_lshlrev_b32 v{t0}, 4, v{t0}")
    a(f"v_lshl_add_u32 v{t0}, v{n}, 6, v{t0}")
    a(f"v_add_u32 v{V_XA}, 32768, v{t0}")
    a(f"v_and_b32 v{t1}, 15, v{L}")
    a(f"v_lshlrev_b32 v{t2}, 8, v{g}")
    for q in range(4):
        a(f"v_add_u32 v{t3}, {4*q}, v{g}")
        a(f"v_xor_b32 v{t3}, v{t3}, v{t1}")
        a(f"v_lshl_add_u32 v{V_DK+q}, v{t3}, 4, v{t2}")
    a(f"v_lshlrev_b32 v{t3}, 1, v{g}")
    a(f"v_xor_b32 v{t3}, v{t3}, v{t1}")
    a(f"v_lshl_add_u32 v{V_DV}, v{t3}, 4, v{t2}")
    a(f"v_xor_b32 v{V_DV+1}, 128, v{V_DV}")
    a(f"v_lshrrev_b32 v{t0}, 1, v{g}")
    a(f"v_xor_b32 v{t0}, v{t0}, v{n}")
    a(f"v_lshlrev_b32 v{t0}, 4, v{t0}")
    a(f"v_lshl_add_u32 v{t0}, v{n}, 8, v{t0}")
    a(f"v_and_b32 v{t1}, 1, v{g}")
    a(f"v_lshl_add_u32 v{V_KL}, v{t1}, 3, v{t0}")
    a(f"v_lshl_add_u32 v{t0}, v{g}, 2, v{r}")
    a(f"v_and_b32 v{t1}, 7, v{t0}")
    a(f"v_lshlrev_b32 v{t1}, 1, v{t1}")
    a(f"v_lshrrev_b32 v{t2}, 1, v{cc}")
    a(f"v_xor_b32 v{t1}, v{t1}, v{t2}")
    a(f"v_lshlrev_b32 v{t1}, 4, v{t1}")
    a(f"v_lshl_add_u32 v{t0}, v{t0}, 8, v{t1}")
    a(f"v_and_b32 v{t1}, 1, v{cc}")
    a(f"v_lshl_add_u32 v{V_VL}, v{t1}, 3, v{t0}")
    def dma_tile(kind, lds_expr, goff_expr, tag):
        items = []
        for h in range(2):
            for q in range(4):
                pre = []
                if q == 0:
                    pre.append(f"s_add_u32 m0, s{lds_expr[0]}, {lds_expr[1] + h*4096}")
                    if goff_expr[0] is None: pre.append(f"s_mov_b32 s{S_T}, {goff_expr[1] + h*4096}")
                    else: pre.append(f"s_add_u32 s{S_T}, s{goff_expr[0]}, {goff_expr[1] + h*4096}")
                if kind == "K":
                    ins = f"buffer_load_dwordx4 v{V_DK+q}, s[{SRD_K}:{SRD_K+3}], s{S_T} offen offset:{q*1024}{nt} lds"
                else:
                    ins = f"buffer_load_dwordx4 v{V_DV + (q & 1)}, s[{SRD_V}:{SRD_V+3}], s{S_T} offen offset:{q*1024}{nt} lds"
                items.append((pre, ins, tag))
        return items
    if C.stamp: a("s_memrealtime s[94:95]")
    QACC = 32
    def qacc(T, jq): return QACC + (T*7 + jq)*4
    XF = [0, 28]; WB = 56; NB = 4; AH = C.AH
    for k in range(4): a(f"v_mov_b32 v{252+k}, 0")
    for jq in range(7): a(f"v_mov_b32 v{V_L+jq}, 0")
    a("s_nop 1")
    for k in range(80, 224, 16): a(f"v_mfma_f32_32x32x16_bf16 a[{k}:{k+15}], v[252:255], v[252:255], 0")
    st()
    def xread(ksr, jq):
        tr.ds(f"ds_read_b128 {ar(XF[ksr%2] + 4*jq, 4)}, v{V_XA} offset:{(ksr % 2)*WR + jq*1024}", ("X", ksr))
    def wread(tile, k):
        ksr, T = divmod(tile, 8)
        off = (ksr % 2)*8192 + (T // 4)*4096 + k*512
        tr.ds(f"ds_read_b64_tr_b16 {ar(WB + 4*(tile % NB) + 2*k, 2)}, v{V_QA + T % 4} offset:{off}", ("A", tile))
    tr.wait_vm(("x", 0), ("wq", 0, 0))
    a("s_barrier")
    if C.stamp: a("s_memrealtime s[96:97]")
    for jq in range(7): xread(0, jq)
    for tile in range(AH):
        wread(tile, 0); wread(tile, 1)
    a("s_waitcnt lgkmcnt(0)")
    a(f"s_mov_b32 s{S_CNT}, 0")
    vm_entry = [("wq", 0, 0)]*4 + [("wq", 0, 1)]*4 + [("wq", 1, 0)]*4 + [("x", 1)]*4 + [("wq", 1, 1)]*4
    def qf(j, jq):
        f = j*7 + jq
        return vr(32 + 4*f, 4) if f < 20 else ar(224 + 4*(f - 20), 4)
    def q_body(last, first=False):
        tr.lds = [("A", t_) for t_ in range(1, AH) for _ in range(2)]
        if not first: tr.vm = list(vm_entry)
        S = Sched(tr)
        NT = 16
        order = list(range(16))
        for tile in range(NT):
            ksr, T = divmod(tile, 8)
            for jq in range(7):
                cop = "0" if (first and ksr == 0) else vr(qacc(T, jq), 4)
                S.mfma(f"{MF} {vr(qacc(T, jq), 4)}, {ar(WB + 4*(tile % NB), 4)}, {ar(XF[ksr%2] + 4*jq, 4)}, {cop}")
        for tile in range(NT):
            ksr, T = divmod(tile, 8)
            g0 = tile*7
            nxt_tile = tile + 1
            nks, nT = divmod(nxt_tile, 8)
            if not (last and nxt_tile == 16):
                need = [("A", nxt_tile)] + ([("X", nks)] if nT == 0 else [])
                S.at(g0 + 6, (lambda need=need: tr.wait_lds(*need)))
            nx = tile + AH
            if not (last and nx >= 16):
                nks2, nT2 = divmod(nx, 8)
                if nT2 % 4 == 0:
                    S.at(g0, (lambda nks2=nks2, nT2=nT2: tr.wait_vm(("wq", nks2, nT2 // 4))))
                S.at(g0 + 1, (lambda nx=nx: wread(nx, 0)))
                S.at(g0 + 2, (lambda nx=nx: wread(nx, 1)))
            if T % 4 == 3 and not last:
                its = dma_wq(ksr + 2, T // 4)
                gaps = [g0 + 3, g0 + 4, g0 + 5, g0 + 6] if True else None
                for k, it in enumerate(its):
                    if not (C.nodma and not first): S.at(gaps[k], (lambda it=it: emit_item(it)), cost=(8 if k == 0 else 4))
            if T == 4 and ksr == 0:
                for jq in range(7):
                    S.at(g0 + 3 + (jq % 3) + (jq // 3)*7, (lambda jq=jq: xread(1, jq)))
            if T == 4 and ksr == 1 and not last:
                def midbar():
                    tr.wait_vm(("x", 1))
                    if not C.nobar: tr("s_barrier")
                    tr(f"v_add_u32 v{V_XA}, s{S_XTOG}, v{V_XA}")
                S.at(g0 + 3, midbar, cost=12)
                for k, it in enumerate(dma_x(2)):
                    S.at(g0 + 5 + 7*(k % 3) + (k // 3), (lambda it=it: emit_item(it)), cost=12)
                for jq in range(7):
                    S.at(g0 + 7 + 3 + (jq % 3) + (jq // 3)*7, (lambda jq=jq: xread(2, jq)))
        tail = []
        if last:
            kv = dma_tile("K", (S_WR, 0), (None, 0), ("kv", 0)) + dma_tile("V", (S_WR, 8192), (None, 0), ("kv", 1))
            for k, it in enumerate(kv):
                S.at(C.kvgap*7 + 3 + 2*k, (lambda it=it: emit_item(it)), cost=8)
            for j in range(4):
                rdy = (8 + 2*j + 1)*7 + 6 + 3
                for jq in range(7):
                    f = j*7 + jq
                    A0, A1 = qacc(2*j, jq), qacc(2*j+1, jq)
                    if f < 20:
                        d = 32 + 4*f
                        ops = [f"v_cvt_pk_bf16_f32 v{d}, v{A0}, v{A0+1}", f"v_cvt_pk_bf16_f32 v{d+1}, v{A0+2}, v{A0+3}",
                               f"v_cvt_pk_bf16_f32 v{d+2}, v{A1}, v{A1+1}", f"v_cvt_pk_bf16_f32 v{d+3}, v{A1+2}, v{A1+3}"]
                    else:
                        d = 224 + 4*(f - 20)
                        ops = [f"v_cvt_pk_bf16_f32 v{V_T+k}, v{x_}, v{y_}" for k, (x_, y_) in enumerate(((A0, A0+1), (A0+2, A0+3), (A1, A1+1), (A1+2, A1+3)))]
                        ops += [f"v_accvgpr_write_b32 a{d+k}, v{V_T+k}" for k in range(4)]
                    if C.prescale:
                        ops = [f"v_mul_f32 v{x_}, s{S_SCALE}, v{x_}" for x_ in (A0, A0+1, A0+2, A0+3, A1, A1+1, A1+2, A1+3)] + ops
                    for o in ops:
                        if rdy < len(S.M): S.fill(o, ready=rdy)
                        else: tail.append(o)
        S.emit()
        return tail
    def q_adv():
        a(f"s_add_u32 s{S_QO}, s{S_QO}, {64*8192}")
        a(f"s_add_u32 s{S_XO}, s{S_XO}, 128")
        a(f"s_add_u32 s{S_XLDS}, s{S_XLDS}, s{S_XTOG}")
        a(f"s_sub_u32 s{S_XTOG}, 0, s{S_XTOG}")
    q_body(False, True)
    q_adv()
    a.label("L_Q")
    q_body(False)
    if C.stamp:
        a("s_memtime s[64:65]")
        a("s_waitcnt lgkmcnt(0)")
        a(f"s_add_u32 s66, s{S_CNT}, 8")
        a(f"v_mov_b32 v{V_TS}, s64")
        a(f"v_cmp_ne_u32 vcc, s66, v{V_LANE}")
        a("s_nop 1")
        a(f"v_cndmask_b32 v{V_STAMP}, v{V_TS}, v{V_STAMP}, vcc")
    q_adv()
    a(f"s_add_u32 s{S_CNT}, s{S_CNT}, 1")
    a(f"s_cmp_lt_u32 s{S_CNT}, 7")
    a("s_cbranch_scc1 L_Q")
    tail = q_body(True)
    a("s_waitcnt lgkmcnt(0)")
    a("s_barrier")
    for o in tail: a(o)
    st()
    KF = 112; VF = 144; SB = 176; PB = 200; NEG = 212
    def sbuf(jq): return SB + 8*(0 if jq == 0 else 1 + (jq - 1) % 2)
    def pbuf(jq): return PB + 4*(0 if jq == 0 else 1 + (jq - 1) % 2)
    def oacc(T, jq): return (T*7 + jq)*4
    for k in range(4): a(f"v_mov_b32 v{18+k}, 0")
    a("s_nop 1")
    for k in range(0, 80, 16): a(f"v_mfma_f32_32x32x16_bf16 a[{k}:{k+15}], v[18:21], v[18:21], 0")
    a(f"v_mfma_f32_32x32x16_bf16 v[{NEG}:{NEG+15}], v[18:21], v[18:21], 0")
    a(f"v_mfma_f32_32x32x16_bf16 v[{NEG+12}:{NEG+27}], v[18:21], v[18:21], 0")
    a("s_nop 7")
    a(f"s_mov_b64 s[{S_FIRST}:{S_FIRST+1}], -1")
    a(f"s_mul_i32 s6, s{P+3}, {8*128*1152}")
    srd(WSRD, WO, "s6", 0, 8*128*1152)
    a(f"s_lshl_b32 s6, s{P+9}, 7")
    a(f"v_lshlrev_b32 v{V_T}, 7, v{V_LANE}")
    a(f"v_mov_b32 v{V_T+1}, 0x7fffff00")
    a(f"v_cmp_gt_u32 vcc, 36, v{V_LANE}")
    a("s_nop 1")
    a(f"v_cndmask_b32 v{V_T}, v{V_T+1}, v{V_T}, vcc")
    a(f"buffer_load_dword v{NEG+28}, v{V_T}, s[{WSRD}:{WSRD+3}], s6 offen")
    a(f"s_add_u32 s6, s6, {36*128}")
    a(f"buffer_load_dword v{NEG+28}, v{V_T}, s[{WSRD}:{WSRD+3}], s6 offen")
    def kaddr():
        ops = [f"v_add_u32 v{V_T+4}, s{S_RD}, v{V_KL}"]
        for k in range(8): ops.append(f"v_xor_b32 v{V_A+k}, {k*32}, v{V_T+4}")
        return ops
    def vaddr():
        ops = [f"v_add_u32 v{V_T+4}, s{S_RD}, v{V_VL}"]
        for T in range(8): ops.append(f"v_xor_b32 v{V_A+T}, {T*32}, v{V_T+4}")
        return ops
    def kreads():
        return [f"ds_read_b64 {vr(KF + (kt*4 + j)*4 + 2*p, 2)}, v{V_A + 2*j + p} offset:{kt*4096}" for kt in range(2) for j in range(4) for p in range(2)]
    def vreads():
        return [f"ds_read_b64_tr_b16 {vr(VF + 4*T + 2*p, 2)}, v{V_A+T} offset:{p*4096}" for T in range(8) for p in range(2)]
    def adv_rd():
        return [f"s_add_u32 s{S_RD}, s{S_RD}, 8192", f"s_cmp_eq_u32 s{S_RD}, s{S_WREND}", f"s_cselect_b32 s{S_RD}, s{S_WR}, s{S_RD}"]
    def refill(kind):
        ins = []
        for it in dma_tile(kind, (S_RD, 0), (S_GOFF, 0), None): ins += it[0] + [it[1]]
        return ins
    def qk_list(jq):
        out = []
        for j in range(4):
            for kt in range(2):
                d = vr(sbuf(jq) + 4*kt, 4)
                cop = vr(NEG + 4*jq, 4) if j == 0 else d
                out.append(f"{MF} {d}, {vr(KF + (kt*4 + j)*4, 4)}, {qf(j, jq)}, {cop}")
        return out
    def pv_list(jq):
        return [f"{MF} {ar(oacc(T, jq), 4)}, {vr(VF + 4*T, 4)}, {vr(pbuf(jq), 4)}, {ar(oacc(T, jq), 4)}" for T in range(8)]
    def softmax(jq):
        Sb = sbuf(jq); Pb = pbuf(jq)
        T = [V_T + i for i in range(4)]
        ops = []
        def e(k):
            if not C.prescale: ops.append((f"v_mul_f32 v{T[k%4]}, s{S_SCALE}, v{Sb+k}", 4))
        def x(k): ops.append((f"v_exp_f32 v{T[k%4]}, v{(Sb+k) if C.prescale else T[k%4]}", 8))
        e(0); e(1); x(0); x(1)
        for j in range(4):
            if 2*j+2 < 8:
                e(2*j+2); e(2*j+3); x(2*j+2); x(2*j+3)
            else: ops.append(("s_nop 0", 4))
            A_, B_ = T[(2*j) % 4], T[(2*j+1) % 4]
            if j == 0: ops.append((f"v_add_f32 v{V_TS}, v{A_}, v{B_}", 4))
            else:
                ops.append((f"v_add_f32 v{V_TS}, v{V_TS}, v{A_}", 4))
                ops.append((f"v_add_f32 v{V_TS}, v{V_TS}, v{B_}", 4))
            ops.append((f"v_cvt_pk_bf16_f32 v{Pb+j}, v{A_}, v{B_}", 4))
        return ops
    def a_phase(NS, sfx):
        a(f"s_add_u32 s{S_WREND}, s{S_WR}, {NS*8192}")
        for i_ in range(2, NS):
            for it in dma_tile("K" if i_ % 2 == 0 else "V", (S_WR, i_*8192), (None, (i_ // 2)*8192), ("kv", i_)): emit_item(it)
        VW = (NS - 1)*8
        kindA = "K" if NS % 2 == 0 else "V"
        kindB = "V" if NS % 2 == 0 else "K"
        offA = lambda t1: ((2*t1 + NS) // 2)*8192
        offB = lambda t1: ((2*t1 + 1 + NS) // 2)*8192
        a(f"s_mov_b32 s{S_RD}, s{S_WR}")
        a(f"s_waitcnt vmcnt({VW + 2})")
        for o in kaddr(): a(o)
        for o in kreads(): a(o)
        a("s_waitcnt lgkmcnt(0)")
        a(f"s_mov_b32 s{S_GOFF}, {offA(0)}")
        for o in refill(kindA): a(o)
        for o in adv_rd(): a(o)
        if not C.vrot:
            a(f"s_waitcnt vmcnt({VW})")
            for o in vaddr(): a(o)
            for o in vreads(): a(o)
            for m in qk_list(0): a(m)
            a("s_waitcnt lgkmcnt(0)")
            a(f"s_mov_b32 s{S_GOFF}, {offB(0)}")
            for o in refill(kindB): a(o)
            for o in adv_rd(): a(o)
            a(f"s_mov_b32 s{S_CNT}, 0")
            a(f"s_mov_b32 s{S_GOFF}, {offA(1)}")
        else:
            for m in qk_list(0): a(m)
            a(f"s_mov_b32 s{S_CNT}, 0")
            a(f"s_mov_b32 s{S_GOFF}, {offB(0)}")
        a("s_nop 7")
        a.label(f"L_A{sfx}")
        tr.lds = []; tr.vm = []
        S = Sched(tr, budget=8)
        blocks = []
        for jq in range(7):
            q0 = len(S.M)
            for m in (qk_list(jq+1) if jq < 6 else qk_list(0)): S.mfma(m)
            p0 = len(S.M)
            for m in pv_list(jq): S.mfma(m)
            blocks.append((q0, p0))
        for jq in range(7):
            rdy = -1 if jq == 0 else blocks[jq-1][1] + 2
            due = blocks[jq][1] - 2
            for ins, c_ in softmax(jq): S.fill(ins, ready=rdy, due=due, cost=c_)
            S.fill(f"v_cmp_nge_f32 vcc, s{S_THR}, v{V_TS}", ready=rdy, due=due)
            S.fill(f"s_or_b64 vcc, vcc, s[{S_FIRST}:{S_FIRST+1}]", ready=rdy, due=due)
            S.fill(f"s_cbranch_vccnz L_rare{sfx}_{jq}", ready=rdy, due=due)
            S.fill(f"L_rare{sfx}_{jq}_ret:", ready=rdy, due=due, cost=0)
            S.fill(f"v_add_f32 v{V_L+jq}, v{V_L+jq}, v{V_TS}", ready=rdy, due=due)
        gk = blocks[5][1]
        def kreload():
            tr(f"s_waitcnt vmcnt({VW})")
            for o in kaddr(): tr(o)
            for o in kreads(): tr(o)
        S.at(gk - 1, kreload, cost=100)
        dBA = offA(1) - offB(0)
        def kdone():
            tr("s_waitcnt lgkmcnt(0)")
            for o in refill(kindA): tr(o)
            if C.vrot and 8192 - dBA: tr(f"s_add_u32 s{S_GOFF}, s{S_GOFF}, {8192 - dBA}")
            for o in adv_rd(): tr(o)
        S.at(blocks[6][0] - 1, kdone, cost=100)
        if C.vrot:
            def vreload():
                tr(f"s_waitcnt vmcnt({VW})")
                for o in vaddr(): tr(o)
                for o in vreads(): tr(o)
            S.at(C.vgap, vreload, cost=100)
            def vdone():
                tr("s_waitcnt lgkmcnt(0)")
                for o in refill(kindB): tr(o)
                if dBA: tr(f"s_add_u32 s{S_GOFF}, s{S_GOFF}, {dBA}")
                for o in adv_rd(): tr(o)
            S.at(blocks[0][1] - 1, vdone, cost=100)
        S.emit()
        if not C.vrot:
            a(f"s_waitcnt vmcnt({VW})")
            for o in vaddr(): a(o)
            for o in vreads(): a(o)
            dAB = offB(1) - offA(1)
            if dAB: a(f"s_add_u32 s{S_GOFF}, s{S_GOFF}, {dAB}")
            a("s_waitcnt lgkmcnt(0)")
            for o in refill(kindB): a(o)
            if 8192 - dAB: a(f"s_add_u32 s{S_GOFF}, s{S_GOFF}, {8192 - dAB}")
            for o in adv_rd(): a(o)
        a(f"s_mov_b64 s[{S_FIRST}:{S_FIRST+1}], 0")
        a(f"s_add_u32 s{S_CNT}, s{S_CNT}, 1")
        a(f"s_cmp_lt_u32 s{S_CNT}, 16")
        a(f"s_cbranch_scc1 L_A{sfx}")
    versions = [(C.NS, "a")] if C.NS2 is None else [(C.NS, "a"), (C.NS2, "b")]
    if C.NS2 is None:
        a_phase(C.NS, "a")
    else:
        if C.xcc:
            a("s_getreg_b32 s6, hwreg(HW_REG_XCC_ID)")
            a("s_and_b32 s6, s6, 1")
        else:
            a("s_and_b32 s6, s2, 1")
        a("s_cmp_eq_u32 s6, 1")
        a("s_cbranch_scc1 L_Avb")
        a_phase(C.NS, "a")
        a("s_branch L_Adone")
        a.label("L_Avb")
        a_phase(C.NS2, "b")
        a.label("L_Adone")
    st()
    V_OW = 9; V_DO = 10; V_OA = 13; V_BA = 14
    u0, u1, u2 = 100, 101, 102
    a(f"v_lshlrev_b32 v{V_OW}, 4, v{V_LANE}")
    a(f"v_add_u32 v{V_BA}, 0, v{V_OW}")
    a(f"v_add_u32 v{V_OW}, s{S_WR}, v{V_OW}")
    a("s_mov_b32 s6, 0x2aaaaaab")
    for i in range(3):
        a(f"v_add_u32 v{u0}, {64*i}, v{V_LANE}")
        a(f"v_mul_hi_u32 v{u1}, v{u0}, s6")
        a(f"v_mul_u32_u24 v{u2}, 6, v{u1}")
        a(f"v_sub_u32 v{u2}, v{u0}, v{u2}")
        a(f"v_mul_u32_u24 v{u1}, 1152, v{u1}")
        a(f"v_lshl_add_u32 v{V_DO+i}, v{u2}, 4, v{u1}")
    a(f"v_lshrrev_b32 v{u0}, 4, v{V_LANE}")
    a(f"v_bfe_u32 v{u1}, v{V_LANE}, 2, 2")
    a(f"v_lshl_add_u32 v{u0}, v{u0}, 2, v{u1}")
    a(f"v_mul_u32_u24 v{u0}, 96, v{u0}")
    a(f"v_and_b32 v{u1}, 3, v{V_LANE}")
    a(f"v_lshl_add_u32 v{u0}, v{u1}, 3, v{u0}")
    a(f"s_add_u32 s6, s{S_WR}, 28672")
    a(f"v_add_u32 v{V_OA}, s6, v{u0}")
    a(f"s_mul_i32 s6, s{P+6}, {512*1152}")
    a(f"s_mul_i32 s7, s{S_WAVE}, 288")
    a(f"s_add_u32 s6, s6, s7")
    a(f"s_sub_u32 s7, {512*1152}, s7")
    srd(SRD_WO, WO, "s6", 0, "s7")
    a(f"s_mov_b32 s{S_OO}, 0")
    a("s_waitcnt vmcnt(0)")
    def dma_wo(pr):
        kap, gam = divmod(pr, 3) if not C.outg else (pr, 0)
        return [([f"s_add_u32 m0, s{S_WR}, {28672 + (pr % 4)*3072 + i*1024}"] + ([f"s_add_u32 s{S_T}, s{S_OO}, {kap*32*1152 + gam*96}"] if i == 0 else ["s_nop 0"]),
                 f"buffer_load_dwordx4 v{V_DO+i}, s[{SRD_WO}:{SRD_WO+3}], s{S_T} offen lds", ("wo", pr)) for i in range(3)]
    tr.vm = []
    for pi in range(4):
        for it in dma_wo(pi): emit_item(it)
    for jq in range(7):
        for o in xlane("v_add_f32", V_L + jq, V_T): a(o)
        a(f"v_rcp_f32 v{V_L+jq}, v{V_L+jq}")
        for jp in range(4):
            b = 32 + ((jq*4 + jp) % 4)*16
            for k in range(4):
                a(f"v_accvgpr_read_b32 v{b+k}, a{oacc(2*jp, jq)+k}")
                a(f"v_accvgpr_read_b32 v{b+4+k}, a{oacc(2*jp+1, jq)+k}")
            for k in range(8): a(f"v_mul_f32 v{b+k}, v{b+k}, v{V_L+jq}")
            for k in range(4): a(f"v_cvt_pk_bf16_f32 v{b+8+k}, v{b+2*k}, v{b+2*k+1}")
            a(f"ds_write_b128 v{V_OW}, {vr(b+8, 4)} offset:{(jq*4 + jp)*1024}")
    a(f"s_lshl_b32 s6, s{P+2}, 4")
    a(f"s_add_u32 s6, s6, s{P+4}")
    a(f"s_lshl_b32 s6, s6, 3")
    a(f"s_add_u32 s6, s6, s{P+6}")
    a(f"s_lshl_b32 s6, s6, 2")
    a(f"s_add_u32 s6, s6, s{S_WAVE}")
    if C.outg:
        a(f"s_mul_i32 s6, s6, 33792")
        srd(SRD_WS, WS, "s6", 0, 33792)
    else:
        a(f"s_lshl_b32 s6, s6, 15")
        srd(SRD_WS, WS, "s6", 0, 32768)
    a("s_waitcnt lgkmcnt(0)")
    a("s_barrier")
    st()
    if C.outg:
        BF = [32, 60]; ACCS = [88, 172]; ABA = 0; NBO = 4
        S_BH, S_BN, S_ON = 61, 62, 63
        V_L16 = V_BA + 2
        a(f"v_mov_b32 v{V_L16}, v{V_BA}")
        def bread(kl, jq):
            reg = V_BA if kl < 4 else V_BA + 1
            tr.ds(f"ds_read_b128 {vr(BF[kl%2] + 4*jq, 4)}, v{reg} offset:{(jq*4 + kl % 4)*1024}", ("B", kl))
        def aread(tile, k):
            pi, cl = divmod(tile, 3)
            tr.ds(f"ds_read_b64_tr_b16 {ar(ABA + 4*(tile % NBO) + 2*k, 2)}, v{V_OA} offset:{(pi % 4)*3072 + cl*32 + k*1536}", ("A", tile))
        def dma_wo2(pr):
            base = S_OO if pr < 4 else S_ON
            kl = pr % 4
            return [([f"s_add_u32 m0, s{S_WR}, {28672 + kl*3072 + i*1024}"] + ([f"s_add_u32 s{S_T}, s{base}, {kl*32*1152}"] if i == 0 else []),
                     f"buffer_load_dwordx4 v{V_DO+i}, s[{SRD_WO}:{SRD_WO+3}], s{S_T} offen lds", ("wo", pr)) for i in range(3)]
        vm_entry_o = [("wo", p) for p in range(4) for _ in range(3)]
        def body(gam, first, last, fillers=None):
            AC = ACCS[gam % 2]
            tr.lds = [("A", t_) for t_ in range(1, AH) for _ in range(2)]
            tr.vm = list(vm_entry_o)
            S = Sched(tr)
            NT = 12
            for tile in range(NT):
                kl, cl = divmod(tile, 3)
                for jq in range(7):
                    d = vr(AC + (cl*7 + jq)*4, 4)
                    cop = "0" if (first and kl == 0) else d
                    S.mfma(f"{MF} {d}, {ar(ABA + 4*(tile % NBO), 4)}, {vr(BF[kl%2] + 4*jq, 4)}, {cop}")
            for tile in range(NT):
                kl, cl = divmod(tile, 3)
                g0 = tile*7
                nt_ = tile + 1
                if not (last and nt_ == NT):
                    need = [("A", nt_)] + ([("B", nt_ // 3)] if nt_ % 3 == 0 else [])
                    S.at(g0 + 6, (lambda need=need: tr.wait_lds(*need)))
                nx = tile + AH
                if not (last and nx >= NT):
                    if nx % 3 == 0: S.at(g0, (lambda nx=nx: tr.wait_vm(("wo", nx // 3))))
                    S.at(g0 + 1, (lambda nx=nx: aread(nx, 0)))
                    S.at(g0 + 2, (lambda nx=nx: aread(nx, 1)))
                if cl == 2 and not last:
                    for k, it in enumerate(dma_wo2(kl + 4)):
                        S.at(g0 + 3 + k, (lambda it=it: emit_item(it)), cost=(8 if k == 0 else 4))
                if cl == 0 and not (last and kl == 3):
                    for jq in range(7):
                        S.at(g0 + 3 + (jq % 4) + (jq // 4)*7, (lambda kl=kl, jq=jq: bread(kl + 1, jq)))
            if fillers:
                for o in fillers: S.fill(o, ready=2)
            S.emit()
        def adv(gam_next_wrap):
            pass
        def set_bases():
            a(f"v_add_u32 v{V_BA}, s{S_BH}, v{V_L16}")
            a(f"v_add_u32 v{V_BA+1}, s{S_BN}, v{V_L16}")
        def store_ops(gam):
            AC = ACCS[gam % 2]
            ops = []
            for i in range(11):
                b = 20 + 0
                d = (2 if i % 2 == 0 else 6)
                t0_ = AC + (2*i)*4
                ops.append(f"v_cvt_pk_bf16_f32 v{d}, v{t0_}, v{t0_+1}")
                ops.append(f"v_cvt_pk_bf16_f32 v{d+1}, v{t0_+2}, v{t0_+3}")
                if i < 10:
                    ops.append(f"v_cvt_pk_bf16_f32 v{d+2}, v{t0_+4}, v{t0_+5}")
                    ops.append(f"v_cvt_pk_bf16_f32 v{d+3}, v{t0_+6}, v{t0_+7}")
                else:
                    ops.append(f"v_mov_b32 v{d+2}, 0"); ops.append(f"v_mov_b32 v{d+3}, 0")
                sl = gam*11 + i
                ops.append(f"s_mov_b32 s{S_T2}, {(sl // 4)*4096}")
                ops.append(f"buffer_store_dwordx4 {vr(d, 4)}, v1, s[{SRD_WS}:{SRD_WS+3}], s{S_T2} offen offset:{(sl % 4)*1024}{C.fst if C.fuse else C.st_flags}")
            return ops
        a(f"v_lshlrev_b32 v1, 4, v{V_LANE}")
        a(f"s_mov_b32 s{S_BH}, 0")
        a(f"s_mov_b32 s{S_BN}, {WR}")
        a(f"s_mov_b32 s{S_OO}, 0")
        a(f"s_mov_b32 s{S_ON}, {128*1152}")
        set_bases()
        tr.lds = []
        for jq in range(7): bread(0, jq)
        a("s_waitcnt vmcnt(9)")
        for tile in range(AH):
            aread(tile, 0); aread(tile, 1)
        a("s_waitcnt lgkmcnt(0)")
        def advance(gam, hh_static=None):
            a(f"s_mov_b32 s{S_BH}, s{S_BN}")
            a(f"s_mov_b32 s{S_OO}, s{S_ON}")
            a(f"s_add_u32 s{S_BN}, s{S_BN}, {WR}")
            a(f"s_add_u32 s{S_ON}, s{S_ON}, {128*1152}")
            a(f"s_cmp_eq_u32 s{S_BN}, {4*WR}")
            a(f"s_cselect_b32 s{S_BN}, 0, s{S_BN}")
            a(f"s_cselect_b32 s{S_ON}, {(gam+1)*96}, s{S_ON}")
            set_bases()
        for gam in range(3):
            fl = store_ops(gam - 1) if gam else None
            body(gam, True, False, fl)
            advance(gam)
            a(f"s_mov_b32 s{S_CNT}, 0")
            nloop = 3 if gam < 2 else 2
            a.label(f"L_O{gam}")
            body(gam, False, False)
            advance(gam)
            a(f"s_add_u32 s{S_CNT}, s{S_CNT}, 1")
            a(f"s_cmp_lt_u32 s{S_CNT}, {nloop}")
            a(f"s_cbranch_scc1 L_O{gam}")
            if gam == 2:
                body(gam, False, True)
        st()
        a("s_nop 7"); a("s_nop 7")
        for o in store_ops(2): a(o)
    else:
        BF = [32, 60]; AB = 88; NBO = 4
        def oa(ct, jq): return (ct*7 + jq)*4
        def bread(kl, jq):
            reg = V_BA if kl < 4 else V_BA + 1
            tr.ds(f"ds_read_b128 {vr(BF[kl%2] + 4*jq, 4)}, v{reg} offset:{(jq*4 + kl % 4)*1024}", ("B", kl))
        def aread(tile, k):
            pi, cl = divmod(tile, 3)
            tr.ds(f"ds_read_b64_tr_b16 {vr(AB + 4*(tile % NBO) + 2*k, 2)}, v{V_OA} offset:{(pi % 4)*3072 + cl*32 + k*1536}", ("A", tile))
        vm_entry_o = [("wo", p) for p in range(4) for _ in range(3)]
        def out_body(first, last, extra_fill=None):
            tr.lds = [("A", t_) for t_ in range(1, AH) for _ in range(2)]
            tr.vm = list(vm_entry_o)
            S = Sched(tr)
            NT = 36
            for tile in range(NT):
                kl, ct = divmod(tile, 9)
                for jq in range(7):
                    cop = "0" if (first and kl == 0) else ar(oa(ct, jq), 4)
                    S.mfma(f"{MF} {ar(oa(ct, jq), 4)}, {vr(AB + 4*(tile % NBO), 4)}, {vr(BF[kl%2] + 4*jq, 4)}, {cop}")
            for tile in range(NT):
                kl, ct = divmod(tile, 9)
                g0 = tile*7
                nt_ = tile + 1
                if not (last and nt_ == NT):
                    need = [("A", nt_)] + ([("B", nt_ // 9)] if nt_ % 9 == 0 else [])
                    S.at(g0 + 6, (lambda need=need: tr.wait_lds(*need)))
                nx = tile + AH
                if not (last and nx >= NT):
                    if nx % 3 == 0: S.at(g0, (lambda nx=nx: tr.wait_vm(("wo", nx // 3))))
                    S.at(g0 + 1, (lambda nx=nx: aread(nx, 0)))
                    S.at(g0 + 2, (lambda nx=nx: aread(nx, 1)))
                if tile % 3 == 2:
                    pi = tile // 3
                    if not (last and pi + 4 >= 12):
                        for k, it in enumerate(dma_wo(pi + 4)):
                            S.at(g0 + 3 + k, (lambda it=it: emit_item(it)), cost=12)
                if ct == 4 and not (last and kl == 3):
                    for jq in range(7):
                        S.at(g0 + 3 + (jq % 4) + (jq // 4)*7, (lambda kl=kl, jq=jq: bread(kl + 1, jq)))
            if extra_fill: extra_fill(S)
            S.emit()
        a(f"v_add_u32 v{V_BA+1}, {WR}, v{V_BA}")
        tr.lds = []
        for jq in range(7): bread(0, jq)
        a("s_waitcnt vmcnt(9)")
        for tile in range(AH):
            aread(tile, 0); aread(tile, 1)
        a("s_waitcnt lgkmcnt(0)")
        def adv_head():
            a(f"s_add_u32 s{S_OO}, s{S_OO}, {128*1152}")
            a(f"v_add_u32 v{V_BA}, {WR}, v{V_BA}")
            a(f"v_add_u32 v{V_BA+1}, {WR}, v{V_BA+1}")
        out_body(True, False)
        adv_head()
        a(f"s_mov_b32 s{S_CNT}, 0")
        a.label("L_O")
        out_body(False, False)
        adv_head()
        a(f"s_add_u32 s{S_CNT}, s{S_CNT}, 1")
        a(f"s_cmp_lt_u32 s{S_CNT}, 2")
        a("s_cbranch_scc1 L_O")
        a(f"v_lshlrev_b32 v1, 4, v{V_LANE}")
        done_pairs = [0]
        stf = C.fst if C.fuse else C.st_flags
        def store_pair(i):
            b = 104 + (i % 4)*16
            ops = []
            nt_ = 2 if i < 31 else 1
            for k in range(4*nt_): ops.append(f"v_accvgpr_read_b32 v{b+k}, a{8*i+k}")
            for k in range(2*nt_): ops.append(f"v_cvt_pk_bf16_f32 v{b+8+k}, v{b+2*k}, v{b+2*k+1}")
            if nt_ == 1:
                ops.append(f"v_mov_b32 v{b+10}, 0"); ops.append(f"v_mov_b32 v{b+11}, 0")
            ops.append(f"s_mov_b32 s{S_T2}, {(i // 4)*4096}")
            ops.append(f"buffer_store_dwordx4 {vr(b+8, 4)}, v1, s[{SRD_WS}:{SRD_WS+3}], s{S_T2} offen offset:{(i % 4)*1024}{stf}")
            return ops
        tailst = []
        def fill_stores(S):
            for i in range(32):
                tl = min(2*i + 1, 62)
                ct = tl // 7
                rdy = (27 + ct)*7 + (tl % 7) + 3
                for o in store_pair(i):
                    if rdy < len(S.M) - 1: S.fill(o, ready=rdy)
                    else: tailst.append(o)
        out_body(False, True, fill_stores)
        st()
        a("s_nop 7"); a("s_nop 7")
        for o in tailst: a(o)
    if C.fuse:
        OUTP, DBG = 88, 90
        a(f"s_load_dwordx2 s[{OUTP}:{OUTP+1}], s[0:1], 80")
        a(f"s_load_dwordx2 s[{DBG}:{DBG+1}], s[0:1], 88")
        a(f"s_lshl_b32 s{S_T}, s{P+2}, 4")
        a(f"s_add_u32 s{S_T}, s{S_T}, s{P+4}")
        a(f"s_lshl_b32 s{S_T2}, s{S_T}, 2")
        if C.stamp: a("s_memrealtime s[96:97]")
        a("s_waitcnt vmcnt(0) lgkmcnt(0)")
        if C.stamp: a("s_memrealtime s[98:99]")
        a("s_barrier")
        a(f"s_cmp_eq_u32 s{S_WAVE}, 0")
        a("s_cbranch_scc0 L_wait_done")
        a(f"v_mov_b32 v2, s{S_T2}")
        a("v_mov_b32 v3, 1")
        a(f"v_cmp_eq_u32 vcc, 0, v{V_LANE}")
        a("s_and_saveexec_b64 s[4:5], vcc")
        a(f"global_atomic_add v2, v3, s[{DBG}:{DBG+1}] sc1")
        a.label("L_poll")
        a(f"global_load_dword v4, v2, s[{DBG}:{DBG+1}] sc1")
        a("s_waitcnt vmcnt(0)")
        a("v_cmp_gt_u32 vcc, 8, v4")
        a("s_cbranch_vccz L_poll_done")
        a("s_sleep 2")
        a("s_branch L_poll")
        a.label("L_poll_done")
        a("s_mov_b64 exec, s[4:5]")
        a.label("L_wait_done")
        a("s_barrier")
        if C.stamp: a("s_memrealtime s[60:61]")
        if C.outg:
            RS = 92
            a(f"s_mov_b32 s{RS}, s{WS}")
            a(f"s_and_b32 s{RS+1}, s{WS+1}, 0xffff")
            a(f"s_mov_b32 s{RS+2}, {1024*33792}")
            a(f"s_mov_b32 s{RS+3}, 0x20000")
            OS = 8
            a(f"s_mov_b32 s{OS}, s{OUTP}")
            a(f"s_and_b32 s{OS+1}, s{OUTP+1}, 0xffff")
            a(f"s_mov_b32 s{OS+2}, {16*112*1152*2}")
            a(f"s_mov_b32 s{OS+3}, 0x20000")
            a(f"s_lshl_b32 s12, s{P+6}, 2")
            a(f"s_add_u32 s12, s12, s{S_WAVE}")
            a(f"v_lshlrev_b32 v5, 4, v{V_LANE}")
            a(f"s_mul_i32 s15, s{S_T}, {32*33792}")
            NTK = 5
            for k in range(NTK):
                a(f"s_add_u32 s13, s12, {32*k}")
                a(f"s_mul_i32 s14, s13, {(2**16 + 32)//33}")
                a("s_lshr_b32 s14, s14, 16")
                a("s_mul_i32 s16, s14, 33")
                a("s_sub_u32 s16, s13, s16")
                a(f"s_mul_i32 s17, s14, 33792")
                a("s_lshl_b32 s18, s16, 10")
                a("s_add_u32 s17, s17, s18")
                a("s_add_u32 s17, s17, s15")
                a("s_cmp_ge_u32 s13, 132")
                a("s_cselect_b32 s17, 0x7f000000, s17")
                a(f"s_mov_b32 s{36+2*k}, s14") if False else None
                a(f"v_writelane_b32 v10, s14, {k}")
                a(f"v_writelane_b32 v10, s16, {8+k}")
                a(f"v_writelane_b32 v10, s13, {16+k}")
                for p_ in range(8):
                    r0 = 32 + (k*8 + p_)*4
                    a(f"buffer_load_dwordx4 v[{r0}:{r0+3}], v5, s[{RS}:{RS+3}], s17 offen{C.fld}")
                    if p_ < 7: a(f"s_add_u32 s17, s17, {4*33792}")
            a(f"v_and_b32 v3, 15, v{V_LANE}")
            a(f"v_lshrrev_b32 v4, 4, v{V_LANE}")
            a(f"s_mul_i32 s18, s{P+4}, 112")
            a("v_add_u32 v6, s18, v3")
            a("s_movk_i32 s19, 2304")
            a("v_mul_lo_u32 v6, v6, s19")
            a("v_lshl_add_u32 v6, v4, 3, v6")
            a(f"s_mul_i32 s19, s{P+2}, 1152")
            for k in range(NTK):
                a(f"s_waitcnt vmcnt({(NTK-1-k)*8 + 2*k})")
                acc = 200 + (k % 2)*8
                for p_ in range(8):
                    for q in range(4):
                        src = 32 + (k*8 + p_)*4 + q
                        if p_ == 0:
                            a(f"v_lshlrev_b32 v{acc+2*q}, 16, v{src}")
                            a(f"v_and_b32 v{acc+2*q+1}, 0xffff0000, v{src}")
                        else:
                            a(f"v_lshlrev_b32 v8, 16, v{src}")
                            a(f"v_and_b32 v9, 0xffff0000, v{src}")
                            a(f"v_add_f32 v{acc+2*q}, v{acc+2*q}, v8")
                            a(f"v_add_f32 v{acc+2*q+1}, v{acc+2*q+1}, v9")
                o_ = 220 + (k % 2)*4
                for q in range(4): a(f"v_cvt_pk_bf16_f32 v{o_+q}, v{acc+2*q}, v{acc+2*q+1}")
                a(f"v_readlane_b32 s14, v10, {k}")
                a(f"v_readlane_b32 s16, v10, {8+k}")
                a(f"v_readlane_b32 s13, v10, {16+k}")
                a("s_nop 3")
                a(f"s_mul_i32 s20, s16, {(2**16 + 10)//11}")
                a("s_lshr_b32 s20, s20, 16")
                a("s_mul_i32 s21, s20, 11")
                a("s_sub_u32 s21, s16, s21")
                a("s_mul_i32 s20, s20, 96")
                a("s_mul_i32 s22, s14, 288")
                a("s_add_u32 s20, s20, s22")
                a("s_add_u32 s20, s20, s19")
                for h in range(2):
                    a("s_lshl_b32 s22, s21, 1")
                    if h: a("s_add_u32 s22, s22, 1")
                    a(f"s_mul_i32 s23, s22, {(2**16 + 6)//7}")
                    a("s_lshr_b32 s23, s23, 16")
                    a("s_mul_i32 s24, s23, 7")
                    a("s_sub_u32 s24, s22, s24")
                    a(f"s_mul_i32 s24, s24, {16*2304}")
                    a("s_lshl_b32 s23, s23, 5")
                    a("s_add_u32 s24, s24, s23")
                    a("s_add_u32 s24, s24, s20")
                    a("s_cmp_eq_u32 s22, 21")
                    a("s_cselect_b32 s24, 0x7f000000, s24")
                    a("s_cmp_ge_u32 s13, 132")
                    a("s_cselect_b32 s24, 0x7f000000, s24")
                    a(f"buffer_store_dwordx2 v[{o_+2*h}:{o_+2*h+1}], v6, s[{OS}:{OS+3}], s24 offen")
        else:
            RS = 92
            a(f"s_mov_b32 s{RS}, s{WS}")
            a(f"s_and_b32 s{RS+1}, s{WS+1}, 0xffff")
            a(f"s_mov_b32 s{RS+2}, {256*131072}")
            a(f"s_mov_b32 s{RS+3}, 0x20000")
            OS = 8
            a(f"s_mov_b32 s{OS}, s{OUTP}")
            a(f"s_and_b32 s{OS+1}, s{OUTP+1}, 0xffff")
            a(f"s_mov_b32 s{OS+2}, {16*112*1152*2}")
            a(f"s_mov_b32 s{OS+3}, 0x20000")
            a(f"s_lshl_b32 s12, s{P+6}, 2")
            a(f"s_add_u32 s12, s12, s{S_WAVE}")
            a(f"s_lshl_b32 s12, s12, 2")
            a(f"s_lshr_b32 s13, s12, 5")
            a(f"s_and_b32 s14, s12, 31")
            a(f"s_lshl_b32 s15, s{S_T}, 20")
            a(f"s_lshl_b32 s16, s13, 15")
            a(f"s_add_u32 s15, s15, s16")
            a(f"s_lshl_b32 s16, s14, 10")
            a(f"s_add_u32 s15, s15, s16")
            a(f"v_lshlrev_b32 v5, 4, v{V_LANE}")
            for p_ in range(8):
                for k in range(4):
                    r0 = 32 + (k*8 + p_)*4
                    a(f"buffer_load_dwordx4 v[{r0}:{r0+3}], v5, s[{RS}:{RS+3}], s15 offen offset:{k*1024}{C.fld}")
                if p_ < 7: a("s_add_u32 s15, s15, 131072")
            a(f"v_and_b32 v3, 15, v{V_LANE}")
            a(f"v_lshrrev_b32 v4, 4, v{V_LANE}")
            a(f"s_mul_i32 s18, s{P+4}, 112")
            a("v_add_u32 v6, s18, v3")
            a("s_movk_i32 s19, 2304")
            a("v_mul_lo_u32 v6, v6, s19")
            a("v_lshl_add_u32 v6, v4, 3, v6")
            a(f"s_mul_i32 s19, s{P+2}, 1152")
            a("s_mul_i32 s20, s13, 288")
            a("s_add_u32 s19, s19, s20")
            for k in range(4):
                pass
            a("s_waitcnt vmcnt(0)")
            if C.stamp: a("s_memrealtime s[62:63]")
            for k in range(4):
                acc = 160 + k*8
                for p_ in range(8):
                    for q in range(4):
                        src = 32 + (k*8 + p_)*4 + q
                        if p_ == 0:
                            a(f"v_lshlrev_b32 v{acc+2*q}, 16, v{src}")
                            a(f"v_and_b32 v{acc+2*q+1}, 0xffff0000, v{src}")
                        else:
                            a(f"v_lshlrev_b32 v8, 16, v{src}")
                            a(f"v_and_b32 v9, 0xffff0000, v{src}")
                            a(f"v_add_f32 v{acc+2*q}, v{acc+2*q}, v8")
                            a(f"v_add_f32 v{acc+2*q+1}, v{acc+2*q+1}, v9")
                for q in range(4): a(f"v_cvt_pk_bf16_f32 v{200+4*k+q}, v{acc+2*q}, v{acc+2*q+1}")
                for h in range(2):
                    a(f"s_add_u32 s21, s14, {k}")
                    a("s_lshl_b32 s22, s21, 1")
                    if h: a("s_add_u32 s22, s22, 1")
                    a(f"s_mul_i32 s23, s22, {(2**16 + 6)//7}")
                    a("s_lshr_b32 s23, s23, 16")
                    a("s_mul_i32 s24, s23, 7")
                    a("s_sub_u32 s24, s22, s24")
                    a(f"s_mul_i32 s24, s24, {16*2304}")
                    a("s_lshl_b32 s23, s23, 5")
                    a("s_add_u32 s24, s24, s23")
                    a("s_add_u32 s24, s24, s19")
                    a("s_cmp_eq_u32 s22, 63")
                    a("s_cselect_b32 s24, 0x7f000000, s24")
                    a(f"buffer_store_dwordx2 v[{200+4*k+2*h}:{201+4*k+2*h}], v6, s[{OS}:{OS+3}], s24 offen")
    if C.stamp:
        st()
        a("s_waitcnt vmcnt(0)")
        st()
        a("s_memrealtime s[68:69]")
        a("s_waitcnt lgkmcnt(0)")
        a(f"v_writelane_b32 v{V_STAMP}, s68, 63")
        a(f"v_writelane_b32 v{V_STAMP}, s70, 62")
        if not C.fuse:
            for k in range(5): a(f"v_writelane_b32 v{V_STAMP}, s{88+2*k}, {48+k}")
        else:
            for k, r_ in enumerate((96, 98, 60, 62)): a(f"v_writelane_b32 v{V_STAMP}, s{r_}, {48+k}")
        a(f"s_mov_b32 s{SRD_WS}, s{WS}")
        a(f"s_and_b32 s{SRD_WS+1}, s{WS+1}, 0xffff")
        a(f"s_mov_b32 s{SRD_WS+2}, 0x4000000")
        a(f"s_lshl_b32 s{S_T}, s2, 2")
        a(f"s_add_u32 s{S_T}, s{S_T}, s{S_WAVE}")
        a(f"s_lshl_b32 s{S_T}, s{S_T}, 8")
        a(f"s_add_u32 s{S_T}, s{S_T}, {40<<20}")
        a(f"v_lshlrev_b32 v1, 2, v{V_LANE}")
        a(f"buffer_store_dword v{V_STAMP}, v1, s[{SRD_WS}:{SRD_WS+3}], s{S_T} offen")
    a("s_endpgm")
    for _, sfx in versions:
        for jq in range(7):
            Sb = sbuf(jq)
            a.label(f"L_rare{sfx}_{jq}")
            a("s_nop 7")
            d, tm = V_T, V_T + 1
            a(f"v_max3_f32 v{d}, v{Sb}, v{Sb+1}, v{Sb+2}")
            a(f"v_max3_f32 v{tm}, v{Sb+3}, v{Sb+4}, v{Sb+5}")
            a(f"v_max3_f32 v{d}, v{d}, v{Sb+6}, v{Sb+7}")
            a(f"v_max_f32 v{d}, v{d}, v{tm}")
            for o in xlane("v_max_f32", d, tm): a(o)
            a(f"s_cmp_eq_u32 s{S_CNT}, 0")
            a(f"s_cbranch_scc1 L_rare{sfx}_{jq}_first")
            a(f"v_max_f32 v{d}, 0, v{d}")
            a(f"v_sub_f32 v{tm}, 0, v{d}") if C.prescale else a(f"v_mul_f32 v{tm}, s{S_NSC}, v{d}")
            a(f"v_exp_f32 v{tm}, v{tm}")
            a("s_nop 0")
            for T in range(8):
                for k in range(4):
                    a(f"v_accvgpr_read_b32 v{V_T+2}, a{oacc(T, jq)+k}")
                    a(f"v_mul_f32 v{V_T+2}, v{V_T+2}, v{tm}")
                    a(f"v_accvgpr_write_b32 a{oacc(T, jq)+k}, v{V_T+2}")
            a(f"v_mul_f32 v{V_L+jq}, v{V_L+jq}, v{tm}")
            a.label(f"L_rare{sfx}_{jq}_first")
            for k in range(8): a(f"v_sub_f32 v{Sb+k}, v{Sb+k}, v{d}")
            for k in range(4): a(f"v_sub_f32 v{NEG+4*jq+k}, v{NEG+4*jq+k}, v{d}")
            for ins, c_ in softmax(jq): a(ins)
            a("s_nop 1")
            a(f"s_branch L_rare{sfx}_{jq}_ret")
    a.label("L_exit")
    a("s_endpgm")
    a.label("L_code_end")
    return a.text()

def gen_reduce2():
    a = Asm()
    a("s_cmp_ge_u32 s2, 1056")
    a("s_cbranch_scc1 R_exit")
    a("s_load_dwordx2 s[4:5], s[0:1], 96")
    a("s_load_dwordx2 s[6:7], s[0:1], 80")
    a("v_lshrrev_b32 v1, 6, v0")
    a("v_and_b32 v2, 63, v0")
    a("v_readfirstlane_b32 s8, v1")
    a("s_lshl_b32 s9, s2, 2")
    a("s_add_u32 s9, s9, s8")
    a(f"s_mul_hi_u32 s11, s9, {(2**32 + 32)//33}")
    a("s_mul_i32 s12, s11, 33")
    a("s_sub_u32 s12, s9, s12")
    a("s_and_b32 s13, s11, 3")
    a("s_lshr_b32 s14, s11, 2")
    a(f"s_mul_i32 s15, s14, {32*33792}")
    a(f"s_mul_i32 s16, s13, 33792")
    a("s_add_u32 s15, s15, s16")
    a("s_lshl_b32 s16, s12, 10")
    a("s_add_u32 s15, s15, s16")
    a("s_waitcnt lgkmcnt(0)")
    a("s_mov_b32 s20, s4")
    a("s_and_b32 s21, s5, 0xffff")
    a(f"s_mov_b32 s22, {1024*33792}")
    a("s_mov_b32 s23, 0x20000")
    a("s_mov_b32 s24, s6")
    a("s_and_b32 s25, s7, 0xffff")
    a(f"s_mov_b32 s26, {16*112*1152*2}")
    a("s_mov_b32 s27, 0x20000")
    a("v_lshlrev_b32 v5, 4, v2")
    for p in range(8):
        a(f"buffer_load_dwordx4 v[{16+4*p}:{19+4*p}], v5, s[20:23], s15 offen")
        if p < 7: a(f"s_add_u32 s15, s15, {4*33792}")
    a("v_and_b32 v3, 15, v2")
    a("v_lshrrev_b32 v4, 4, v2")
    a("s_and_b32 s18, s14, 15")
    a("s_lshr_b32 s19, s14, 4")
    a("s_mul_i32 s18, s18, 112")
    a("s_movk_i32 s28, 2304")
    a("v_add_u32 v6, s18, v3")
    a("v_mul_lo_u32 v6, v6, s28")
    a("v_lshlrev_b32 v4, 3, v4")
    a("v_add_u32 v6, v6, v4")
    a("s_mul_i32 s19, s19, 1152")
    a("s_mul_i32 s29, s13, 288")
    a("s_add_u32 s19, s19, s29")
    a(f"s_mul_i32 s35, s12, {(2**16 + 10)//11}")
    a("s_lshr_b32 s35, s35, 16")
    a("s_mul_i32 s36, s35, 11")
    a("s_sub_u32 s36, s12, s36")
    a("s_mul_i32 s35, s35, 96")
    a("s_add_u32 s19, s19, s35")
    for k in range(2):
        a(f"s_lshl_b32 s30, s36, 1")
        if k: a("s_add_u32 s30, s30, 1")
        a(f"s_mul_i32 s31, s30, {(2**16 + 6)//7}")
        a("s_lshr_b32 s31, s31, 16")
        a("s_mul_i32 s32, s31, 7")
        a("s_sub_u32 s32, s30, s32")
        a(f"s_mul_i32 s32, s32, {16*2304}")
        a("s_lshl_b32 s31, s31, 5")
        a("s_add_u32 s32, s32, s31")
        a(f"s_add_u32 s{33+k}, s32, s19")
    a("s_cmp_eq_u32 s36, 10")
    a("s_cselect_b32 s34, 0x7f000000, s34")
    for p in range(8):
        a(f"s_waitcnt vmcnt({7-p})")
        for k in range(4):
            src = 16 + 4*p + k
            if p == 0:
                a(f"v_lshlrev_b32 v{48+2*k}, 16, v{src}")
                a(f"v_and_b32 v{49+2*k}, 0xffff0000, v{src}")
            else:
                a(f"v_lshlrev_b32 v8, 16, v{src}")
                a(f"v_and_b32 v9, 0xffff0000, v{src}")
                a(f"v_add_f32 v{48+2*k}, v{48+2*k}, v8")
                a(f"v_add_f32 v{49+2*k}, v{49+2*k}, v9")
    for k in range(4): a(f"v_cvt_pk_bf16_f32 v{56+k}, v{48+2*k}, v{49+2*k}")
    a("buffer_store_dwordx2 v[56:57], v6, s[24:27], s33 offen")
    a("buffer_store_dwordx2 v[58:59], v6, s[24:27], s34 offen")
    a.label("R_exit")
    a("s_endpgm")
    return a.text()

def generate(path):
    body = gen_main()
    red = gen_reduce2() if C.outg else gen_reduce()
    if C.fuse:
        txt = make_file([(KN, 256, 256, 163840)], [(KN, body, 512, 102, 256)])
        open(path, "w").write(txt)
        return
    ll = [("attn_main_kernel", 256, 256, 163840), ("attn_reduce_kernel", 1056 if C.outg else 1024, 256, 0)]
    if C.only == "main": ll = ll[:1]
    txt = make_file(ll, [("attn_main_kernel", body, 512, 100, 256), ("attn_reduce_kernel", red, 64, 40, 64)])
    open(path, "w").write(txt)

if __name__ == "__main__":
    out = sys.argv[1] if len(sys.argv) > 1 else "w3.s"
    for kv in sys.argv[2:]:
        k, v = kv.split("=")
        setattr(C, k, eval(v))
    generate(out)
```

```python
import sys, struct, math
from asmlib import *
from gen_w import Tracker, Sched, xlane, vr, ar, f2u, MF, gen_reduce as gen_reduce0
def gen_reduce():
    t = gen_reduce0()
    return t.replace("s15 offen", "s15 offen" + C.rld)

class Cfg:
    nt_kv = True
    THR = 0x47800000
    stamp = False
    st_flags = ""
    only = None
    AH = 2
    nobar = False
    rot = True
    vrot = True
    vgap = 1
    rld = ""
    prescale = True
    outg = False
    NS = 4
    NS2 = None
    xcc = False
    fst = " sc0 sc1"
    fld = " sc0 sc1"
    fuse = False
    kvgap = 10
    codepf = False
    qnt = ""
    nodma = False
    noxread = False
C = Cfg()

WR = 40960
S_WAVE = 3
SRD_X = 8; SRD_WQ = 12; SRD_K = 16; SRD_V = 20; SRD_WO = 24; SRD_WS = 28
S_WR = 32; S_T = 33; S_T2 = 34; S_CNT = 35
S_RD = 36; S_GOFF = 37
S_THR = 38; S_SCALE = 39; S_NSC = 40
S_QO = 41
S_FIRST = 42
S_WREND = 44
S_XO = 45
S_XLDS = 46
S_OO = 47
S_P = 48
WSRD = 84
S_XTOG = 60
V_LANE = 0
V_DK = 1; V_DV = 5; V_KL = 7; V_VL = 8
V_A = 9; V_T = 17; V_TS = 23; V_L = 24; V_STAMP = 31

def gen_main():
    a = Asm()
    tr = Tracker(a)
    P = S_P
    nt = " nt" if C.nt_kv else ""
    stamp_i = [0]
    def st():
        if C.stamp:
            a("s_memtime s[64:65]")
            a("s_memrealtime s[66:67]")
            a("s_waitcnt lgkmcnt(0)")
            a(f"v_writelane_b32 v{V_STAMP}, s64, {stamp_i[0]}")
            a(f"v_writelane_b32 v{V_STAMP}, s66, {32 + stamp_i[0]}")
            tr.lds = []
        stamp_i[0] += 1
    X, K, V, WQ, WO, WS = 72, 74, 76, 78, 80, 82
    a("s_cmp_ge_u32 s2, 256")
    a("s_cbranch_scc1 L_exit")
    if C.codepf:
        a("s_getpc_b64 s[86:87]")
        a.label("L_pc")
        a("v_lshrrev_b32 v1, 6, v0")
        a("s_lshr_b32 s6, s2, 3")
        a("v_lshl_add_u32 v1, s6, 2, v1")
        a("v_mul_u32_u24 v2, 43691, v1")
        a("v_lshrrev_b32 v2, 18, v2")
        a("v_mul_u32_u24 v2, 6, v2")
        a("v_sub_u32 v1, v1, v2")
        a("v_lshlrev_b32 v1, 13, v1")
        a("v_and_b32 v2, 63, v0")
        a("v_lshl_add_u32 v1, v2, 7, v1")
        a("v_min_u32 v1, (L_code_end - L_pc - 4), v1")
        a("v_and_b32 v1, -4, v1")
        a("global_load_dword v23, v1, s[86:87]")
    a(f"s_and_b32 s{P+2}, s2, 1")
    a(f"s_mul_i32 s{P+7}, s{P+2}, 40")
    a(f"s_add_u32 s4, s0, s{P+7}")
    a("s_addc_u32 s5, s1, 0")
    a(f"s_load_dwordx2 s[{X}:{X+1}], s[4:5], 0")
    a(f"s_load_dwordx2 s[{WQ}:{WQ+1}], s[4:5], 24")
    a(f"s_load_dwordx2 s[{K}:{K+1}], s[4:5], 8")
    a(f"s_load_dwordx2 s[{V}:{V+1}], s[4:5], 16")
    a(f"s_load_dwordx2 s[{WO}:{WO+1}], s[4:5], 32")
    a(f"s_load_dwordx2 s[{WS}:{WS+1}], s[0:1], 96")
    if C.stamp: a("s_memrealtime s[70:71]")
    a(f"s_and_b32 s{P}, s2, 7")
    a(f"s_lshr_b32 s{P+1}, s2, 3")
    a(f"s_and_b32 s{P+5}, s{P+1}, 1")
    a(f"s_lshr_b32 s{P+3}, s{P}, 1")
    a(f"s_lshr_b32 s{P+4}, s{P+1}, 1")
    a(f"s_lshl_b32 s{P+6}, s{P+3}, 1")
    a(f"s_add_u32 s{P+6}, s{P+6}, s{P+5}")
    a("v_lshrrev_b32 v1, 6, v0")
    a(f"v_and_b32 v{V_LANE}, 63, v0")
    a(f"v_readfirstlane_b32 s{S_WAVE}, v1")
    L = V_LANE
    t0, t1, t2, t3, n, g, r, cc = 232, 233, 234, 235, 236, 237, 238, 239
    V_DQ = 9; V_DX = 13; V_XA = 14; V_QA = 15
    a(f"v_lshrrev_b32 v{t0}, 3, v{L}")
    a(f"v_and_b32 v{t1}, 7, v{L}")
    a(f"v_bfe_u32 v{t3}, v{L}, 4, 1")
    a(f"v_lshlrev_b32 v{t3}, 1, v{t3}")
    a(f"v_xor_b32 v{t3}, v{t3}, v{t1}")
    a(f"v_lshlrev_b32 v{t3}, 4, v{t3}")
    a(f"v_lshlrev_b32 v{t2}, 13, v{t0}")
    a(f"v_add_u32 v{V_DQ}, v{t2}, v{t3}")
    a(f"v_xor_b32 v{V_DQ+1}, 64, v{V_DQ}")
    a(f"v_add_u32 v{V_DQ+1}, {65536-1024}, v{V_DQ+1}")
    a(f"v_add_u32 v{V_DQ+2}, {2*(65536-1024)}, v{V_DQ}")
    a(f"v_add_u32 v{V_DQ+3}, {2*(65536-1024)}, v{V_DQ+1}")
    a(f"v_lshrrev_b32 v{g}, 4, v{L}")
    a(f"v_and_b32 v{cc}, 3, v{L}")
    a(f"v_lshrrev_b32 v{t0}, 2, v{L}")
    a(f"v_sub_u32 v{t1}, 0, v{g}")
    a(f"v_and_b32 v{t1}, 3, v{t1}")
    a(f"v_xor_b32 v{t1}, v{t1}, v{cc}")
    a(f"v_lshlrev_b32 v{t1}, 4, v{t1}")
    a(f"v_mul_u32_u24 v{t2}, 1152, v{t0}")
    a(f"v_add_u32 v{V_DX}, v{t2}, v{t1}")
    a(f"s_mul_i32 s{S_WR}, s{S_WAVE}, {WR}")
    a(f"s_mul_i32 s{S_XO}, s{S_WAVE}, {16*1152}")
    a(f"s_lshl_b32 s{S_XLDS}, s{S_WAVE}, 10")
    a(f"s_lshl_b32 s6, s{P+6}, 2")
    a(f"s_add_u32 s{P+8}, s6, s{S_WAVE}")
    a(f"s_mov_b32 s{S_QO}, 0")
    a("s_waitcnt lgkmcnt(0)")
    def srd(dst, ptr, off_lo, off_hi, size):
        a(f"s_add_u32 s{dst}, s{ptr}, {off_lo}")
        a(f"s_addc_u32 s{dst+1}, s{ptr+1}, {off_hi}")
        a(f"s_and_b32 s{dst+1}, s{dst+1}, 0xffff")
        a(f"s_mov_b32 s{dst+2}, {size}")
        a(f"s_mov_b32 s{dst+3}, 0x20000")
    if C.stamp: a("s_memrealtime s[88:89]")
    a(f"s_lshl_b32 s6, s{P+8}, 8")
    a(f"s_sub_u32 s7, {576*8192}, s6")
    srd(SRD_WQ, WQ, "s6", 0, "s7")
    a(f"s_mul_i32 s6, s{P+4}, 129024")
    srd(SRD_X, X, "s6", 0, 129024)
    XSL = [32768, WR + 32768]
    def dma_wq(ksr, h):
        return [(([f"s_add_u32 m0, s{S_WR}, {16384 + (ksr%2)*8192 + h*4096}",
                   f"s_add_u32 s{S_T}, s{S_QO}, {32*ksr*8192 + h*128}"] if p == 0 else []),
                 f"buffer_load_dwordx4 v{V_DQ + p}, s[{SRD_WQ}:{SRD_WQ+3}], s{S_T} offen offset:{p*1024}{C.qnt} lds", ("wq", ksr, h)) for p in range(4)]
    def dma_x(pr, par=0):
        return [([f"s_add_u32 m0, s{S_XLDS}, {32768 + par*2*WR + sub*WR + k*4096}",
                  f"s_add_u32 s{S_T}, s{S_XO}, {k*64*1152 + (2*pr + sub)*64}"],
                 f"buffer_load_dwordx4 v{V_DX}, s[{SRD_X}:{SRD_X+3}], s{S_T} offen{C.qnt} lds", ("x", pr)) for sub in range(2) for k in range(2)]
    def emit_item(it):
        for s_ in it[0]: tr(s_)
        tr.vmem(it[1], it[2])
    for it in dma_wq(0, 0) + dma_x(0) + dma_wq(0, 1) + dma_wq(1, 0) + dma_wq(1, 1) + dma_x(1, 1): emit_item(it)
    a(f"s_mov_b32 s{S_XTOG}, {2*WR}")
    if C.stamp: a("s_memrealtime s[90:91]")
    a(f"s_lshl_b32 s6, s{P+4}, 5")
    a(f"s_add_u32 s6, s6, s{P+8}")
    a(f"s_lshl_b32 s6, s6, 17")
    srd(SRD_K, K, "s6", 0, 131072)
    srd(SRD_V, V, "s6", 0, 131072)
    a(f"s_lshl_b32 s6, s{P+3}, 11")
    a(f"s_sub_u32 s7, {576*8192}, s6")
    srd(WSRD, WQ, "s6", 0, "s7")
    a(f"s_lshl_b32 s6, s{P+1}, 2")
    a(f"s_add_u32 s6, s6, s{S_WAVE}")
    a(f"s_mul_i32 s{P+9}, s6, 72")
    a(f"v_mov_b32 v{t1}, 0x7fffff00")
    a(f"v_cmp_gt_u32 vcc, 36, v{L}")
    for k in range(2):
        a(f"v_add_u32 v{t0}, s{P+9}, v{L}")
        if k: a(f"v_add_u32 v{t0}, 36, v{t0}")
        a(f"v_lshrrev_b32 v{t2}, 4, v{t0}")
        a(f"v_lshlrev_b32 v{t2}, 13, v{t2}")
        a(f"v_and_b32 v{t0}, 15, v{t0}")
        a(f"v_lshl_add_u32 v{t0}, v{t0}, 7, v{t2}")
        a(f"v_cndmask_b32 v{t0}, v{t1}, v{t0}, vcc")
        tr.vmem(f"buffer_load_dword v{V_TS}, v{t0}, s[{WSRD}:{WSRD+3}], 0 offen{C.qnt}", "warm")
    if C.stamp: a("s_memrealtime s[92:93]")
    if C.stamp: a(f"v_mov_b32 v{V_STAMP}, 0")
    a(f"v_and_b32 v{n}, 15, v{L}")
    a(f"v_bfe_u32 v{r}, v{L}, 2, 2")
    a(f"s_mov_b32 s{S_THR}, {C.THR:#x}")
    sc = math.log2(math.e) / math.sqrt(128.0)
    a(f"s_mov_b32 s{S_SCALE}, {f2u(sc):#x}")
    a(f"s_mov_b32 s{S_NSC}, {f2u(-sc):#x}")
    a(f"v_lshrrev_b32 v{t0}, 1, v{r}")
    a(f"v_and_b32 v{t1}, 1, v{g}")
    a(f"v_lshl_or_b32 v{t0}, v{t1}, 1, v{t0}")
    a(f"v_lshlrev_b32 v{t0}, 1, v{t0}")
    a(f"v_lshrrev_b32 v{t1}, 1, v{cc}")
    a(f"v_xor_b32 v{t0}, v{t0}, v{t1}")
    a(f"v_lshlrev_b32 v{t0}, 4, v{t0}")
    a(f"v_lshl_add_u32 v{t1}, v{g}, 3, v{r}")
    a(f"v_lshl_add_u32 v{t0}, v{t1}, 7, v{t0}")
    a(f"v_and_b32 v{t1}, 1, v{cc}")
    a(f"v_lshl_add_u32 v{t0}, v{t1}, 3, v{t0}")
    a(f"s_add_u32 s6, s{S_WR}, 16384")
    a(f"v_add_u32 v{t0}, s6, v{t0}")
    for Tl in range(4): a(f"v_xor_b32 v{V_QA+Tl}, {Tl*32}, v{t0}")
    a(f"v_lshrrev_b32 v{t0}, 2, v{n}")
    a(f"v_sub_u32 v{t0}, 0, v{t0}")
    a(f"v_and_b32 v{t0}, 3, v{t0}")
    a(f"v_xor_b32 v{t0}, v{t0}, v{g}")
    a(f"v_lshlrev_b32 v{t0}, 4, v{t0}")
    a(f"v_lshl_add_u32 v{t0}, v{n}, 6, v{t0}")
    a(f"v_add_u32 v{V_XA}, 32768, v{t0}")
    a(f"v_and_b32 v{t1}, 15, v{L}")
    a(f"v_lshlrev_b32 v{t2}, 8, v{g}")
    for q in range(4):
        a(f"v_add_u32 v{t3}, {4*q}, v{g}")
        a(f"v_xor_b32 v{t3}, v{t3}, v{t1}")
        a(f"v_lshl_add_u32 v{V_DK+q}, v{t3}, 4, v{t2}")
    a(f"v_lshlrev_b32 v{t3}, 1, v{g}")
    a(f"v_xor_b32 v{t3}, v{t3}, v{t1}")
    a(f"v_lshl_add_u32 v{V_DV}, v{t3}, 4, v{t2}")
    a(f"v_xor_b32 v{V_DV+1}, 128, v{V_DV}")
    a(f"v_lshrrev_b32 v{t0}, 1, v{g}")
    a(f"v_xor_b32 v{t0}, v{t0}, v{n}")
    a(f"v_lshlrev_b32 v{t0}, 4, v{t0}")
    a(f"v_lshl_add_u32 v{t0}, v{n}, 8, v{t0}")
    a(f"v_and_b32 v{t1}, 1, v{g}")
    a(f"v_lshl_add_u32 v{V_KL}, v{t1}, 3, v{t0}")
    a(f"v_lshl_add_u32 v{t0}, v{g}, 2, v{r}")
    a(f"v_and_b32 v{t1}, 7, v{t0}")
    a(f"v_lshlrev_b32 v{t1}, 1, v{t1}")
    a(f"v_lshrrev_b32 v{t2}, 1, v{cc}")
    a(f"v_xor_b32 v{t1}, v{t1}, v{t2}")
    a(f"v_lshlrev_b32 v{t1}, 4, v{t1}")
    a(f"v_lshl_add_u32 v{t0}, v{t0}, 8, v{t1}")
    a(f"v_and_b32 v{t1}, 1, v{cc}")
    a(f"v_lshl_add_u32 v{V_VL}, v{t1}, 3, v{t0}")
    def dma_tile(kind, lds_expr, goff_expr, tag):
        items = []
        for h in range(2):
            for q in range(4):
                pre = []
                if q == 0:
                    pre.append(f"s_add_u32 m0, s{lds_expr[0]}, {lds_expr[1] + h*4096}")
                    if goff_expr[0] is None: pre.append(f"s_mov_b32 s{S_T}, {goff_expr[1] + h*4096}")
                    else: pre.append(f"s_add_u32 s{S_T}, s{goff_expr[0]}, {goff_expr[1] + h*4096}")
                if kind == "K":
                    ins = f"buffer_load_dwordx4 v{V_DK+q}, s[{SRD_K}:{SRD_K+3}], s{S_T} offen offset:{q*1024}{nt} lds"
                else:
                    ins = f"buffer_load_dwordx4 v{V_DV + (q & 1)}, s[{SRD_V}:{SRD_V+3}], s{S_T} offen offset:{q*1024}{nt} lds"
                items.append((pre, ins, tag))
        return items
    if C.stamp: a("s_memrealtime s[94:95]")
    QACC = 32
    def qacc(T, jq): return QACC + (T*7 + jq)*4
    XF = [0, 28]; WB = 56; NB = 4; AH = C.AH
    for k in range(4): a(f"v_mov_b32 v{252+k}, 0")
    for jq in range(7): a(f"v_mov_b32 v{V_L+jq}, 0")
    a("s_nop 1")
    for k in range(80, 224, 16): a(f"v_mfma_f32_32x32x16_bf16 a[{k}:{k+15}], v[252:255], v[252:255], 0")
    st()
    def xread(ksr, jq):
        tr.ds(f"ds_read_b128 {ar(XF[ksr%2] + 4*jq, 4)}, v{V_XA} offset:{(ksr % 2)*WR + jq*1024}", ("X", ksr))
    def wread(tile, k):
        ksr, T = divmod(tile, 8)
        off = (ksr % 2)*8192 + (T // 4)*4096 + k*512
        tr.ds(f"ds_read_b64_tr_b16 {ar(WB + 4*(tile % NB) + 2*k, 2)}, v{V_QA + T % 4} offset:{off}", ("A", tile))
    tr.wait_vm(("x", 0), ("wq", 0, 0))
    a("s_barrier")
    if C.stamp: a("s_memrealtime s[96:97]")
    for jq in range(7): xread(0, jq)
    for tile in range(AH):
        wread(tile, 0); wread(tile, 1)
    a("s_waitcnt lgkmcnt(0)")
    a(f"s_mov_b32 s{S_CNT}, 0")
    vm_entry = [("wq", 0, 0)]*4 + [("wq", 0, 1)]*4 + [("wq", 1, 0)]*4 + [("x", 1)]*4 + [("wq", 1, 1)]*4
    def qf(j, jq):
        f = j*7 + jq
        return vr(32 + 4*f, 4) if f < 20 else ar(224 + 4*(f - 20), 4)
    def q_body(last, first=False):
        tr.lds = [("A", t_) for t_ in range(1, AH) for _ in range(2)]
        if not first: tr.vm = list(vm_entry)
        S = Sched(tr)
        NT = 16
        order = list(range(16))
        for tile in range(NT):
            ksr, T = divmod(tile, 8)
            for jq in range(7):
                cop = "0" if (first and ksr == 0) else vr(qacc(T, jq), 4)
                S.mfma(f"{MF} {vr(qacc(T, jq), 4)}, {ar(WB + 4*(tile % NB), 4)}, {ar(XF[ksr%2] + 4*jq, 4)}, {cop}")
        for tile in range(NT):
            ksr, T = divmod(tile, 8)
            g0 = tile*7
            nxt_tile = tile + 1
            nks, nT = divmod(nxt_tile, 8)
            if not (last and nxt_tile == 16):
                need = [("A", nxt_tile)] + ([("X", nks)] if nT == 0 else [])
                S.at(g0 + 6, (lambda need=need: tr.wait_lds(*need)))
            nx = tile + AH
            if not (last and nx >= 16):
                nks2, nT2 = divmod(nx, 8)
                if nT2 % 4 == 0:
                    S.at(g0, (lambda nks2=nks2, nT2=nT2: tr.wait_vm(("wq", nks2, nT2 // 4))))
                S.at(g0 + 1, (lambda nx=nx: wread(nx, 0)))
                S.at(g0 + 2, (lambda nx=nx: wread(nx, 1)))
            if T % 4 == 3 and not last:
                its = dma_wq(ksr + 2, T // 4)
                gaps = [g0 + 3, g0 + 4, g0 + 5, g0 + 6] if True else None
                for k, it in enumerate(its):
                    if not (C.nodma and not first): S.at(gaps[k], (lambda it=it: emit_item(it)), cost=(8 if k == 0 else 4))
            if T == 4 and ksr == 0:
                for jq in range(7):
                    S.at(g0 + 3 + (jq % 3) + (jq // 3)*7, (lambda jq=jq: xread(1, jq)))
            if T == 4 and ksr == 1 and not last:
                def midbar():
                    tr.wait_vm(("x", 1))
                    if not C.nobar: tr("s_barrier")
                    tr(f"v_add_u32 v{V_XA}, s{S_XTOG}, v{V_XA}")
                S.at(g0 + 3, midbar, cost=12)
                for k, it in enumerate(dma_x(2)):
                    S.at(g0 + 5 + 7*(k % 3) + (k // 3), (lambda it=it: emit_item(it)), cost=12)
                for jq in range(7):
                    S.at(g0 + 7 + 3 + (jq % 3) + (jq // 3)*7, (lambda jq=jq: xread(2, jq)))
        tail = []
        if last:
            kv = dma_tile("K", (S_WR, 0), (None, 0), ("kv", 0)) + dma_tile("V", (S_WR, 8192), (None, 0), ("kv", 1))
            for k, it in enumerate(kv):
                S.at(C.kvgap*7 + 3 + 2*k, (lambda it=it: emit_item(it)), cost=8)
            for j in range(4):
                rdy = (8 + 2*j + 1)*7 + 6 + 3
                for jq in range(7):
                    f = j*7 + jq
                    A0, A1 = qacc(2*j, jq), qacc(2*j+1, jq)
                    if f < 20:
                        d = 32 + 4*f
                        ops = [f"v_cvt_pk_bf16_f32 v{d}, v{A0}, v{A0+1}", f"v_cvt_pk_bf16_f32 v{d+1}, v{A0+2}, v{A0+3}",
                               f"v_cvt_pk_bf16_f32 v{d+2}, v{A1}, v{A1+1}", f"v_cvt_pk_bf16_f32 v{d+3}, v{A1+2}, v{A1+3}"]
                    else:
                        d = 224 + 4*(f - 20)
                        ops = [f"v_cvt_pk_bf16_f32 v{V_T+k}, v{x_}, v{y_}" for k, (x_, y_) in enumerate(((A0, A0+1), (A0+2, A0+3), (A1, A1+1), (A1+2, A1+3)))]
                        ops += [f"v_accvgpr_write_b32 a{d+k}, v{V_T+k}" for k in range(4)]
                    if C.prescale:
                        ops = [f"v_mul_f32 v{x_}, s{S_SCALE}, v{x_}" for x_ in (A0, A0+1, A0+2, A0+3, A1, A1+1, A1+2, A1+3)] + ops
                    for o in ops:
                        if rdy < len(S.M): S.fill(o, ready=rdy)
                        else: tail.append(o)
        S.emit()
        return tail
    def q_adv():
        a(f"s_add_u32 s{S_QO}, s{S_QO}, {64*8192}")
        a(f"s_add_u32 s{S_XO}, s{S_XO}, 128")
        a(f"s_add_u32 s{S_XLDS}, s{S_XLDS}, s{S_XTOG}")
        a(f"s_sub_u32 s{S_XTOG}, 0, s{S_XTOG}")
    q_body(False, True)
    q_adv()
    a.label("L_Q")
    q_body(False)
    if C.stamp:
        a("s_memtime s[64:65]")
        a("s_waitcnt lgkmcnt(0)")
        a(f"s_add_u32 s66, s{S_CNT}, 8")
        a(f"v_mov_b32 v{V_TS}, s64")
        a(f"v_cmp_ne_u32 vcc, s66, v{V_LANE}")
        a("s_nop 1")
        a(f"v_cndmask_b32 v{V_STAMP}, v{V_TS}, v{V_STAMP}, vcc")
    q_adv()
    a(f"s_add_u32 s{S_CNT}, s{S_CNT}, 1")
    a(f"s_cmp_lt_u32 s{S_CNT}, 7")
    a("s_cbranch_scc1 L_Q")
    tail = q_body(True)
    a("s_waitcnt lgkmcnt(0)")
    a("s_barrier")
    for o in tail: a(o)
    st()
    KF = 112; VF = 144; SB = 176; PB = 200; NEG = 212
    def sbuf(jq): return SB + 8*(0 if jq == 0 else 1 + (jq - 1) % 2)
    def pbuf(jq): return PB + 4*(0 if jq == 0 else 1 + (jq - 1) % 2)
    def oacc(T, jq): return (T*7 + jq)*4
    for k in range(4): a(f"v_mov_b32 v{18+k}, 0")
    a("s_nop 1")
    for k in range(0, 80, 16): a(f"v_mfma_f32_32x32x16_bf16 a[{k}:{k+15}], v[18:21], v[18:21], 0")
    a(f"v_mfma_f32_32x32x16_bf16 v[{NEG}:{NEG+15}], v[18:21], v[18:21], 0")
    a(f"v_mfma_f32_32x32x16_bf16 v[{NEG+12}:{NEG+27}], v[18:21], v[18:21], 0")
    a("s_nop 7")
    a(f"s_mov_b64 s[{S_FIRST}:{S_FIRST+1}], -1")
    a(f"s_mul_i32 s6, s{P+3}, {8*128*1152}")
    srd(WSRD, WO, "s6", 0, 8*128*1152)
    a(f"s_lshl_b32 s6, s{P+9}, 7")
    a(f"v_lshlrev_b32 v{V_T}, 7, v{V_LANE}")
    a(f"v_mov_b32 v{V_T+1}, 0x7fffff00")
    a(f"v_cmp_gt_u32 vcc, 36, v{V_LANE}")
    a("s_nop 1")
    a(f"v_cndmask_b32 v{V_T}, v{V_T+1}, v{V_T}, vcc")
    a(f"buffer_load_dword v{NEG+28}, v{V_T}, s[{WSRD}:{WSRD+3}], s6 offen")
    a(f"s_add_u32 s6, s6, {36*128}")
    a(f"buffer_load_dword v{NEG+28}, v{V_T}, s[{WSRD}:{WSRD+3}], s6 offen")
    def kaddr():
        ops = [f"v_add_u32 v{V_T+4}, s{S_RD}, v{V_KL}"]
        for k in range(8): ops.append(f"v_xor_b32 v{V_A+k}, {k*32}, v{V_T+4}")
        return ops
    def vaddr():
        ops = [f"v_add_u32 v{V_T+4}, s{S_RD}, v{V_VL}"]
        for T in range(8): ops.append(f"v_xor_b32 v{V_A+T}, {T*32}, v{V_T+4}")
        return ops
    def kreads():
        return [f"ds_read_b64 {vr(KF + (kt*4 + j)*4 + 2*p, 2)}, v{V_A + 2*j + p} offset:{kt*4096}" for kt in range(2) for j in range(4) for p in range(2)]
    def vreads():
        return [f"ds_read_b64_tr_b16 {vr(VF + 4*T + 2*p, 2)}, v{V_A+T} offset:{p*4096}" for T in range(8) for p in range(2)]
    def adv_rd():
        return [f"s_add_u32 s{S_RD}, s{S_RD}, 8192", f"s_cmp_eq_u32 s{S_RD}, s{S_WREND}", f"s_cselect_b32 s{S_RD}, s{S_WR}, s{S_RD}"]
    def refill(kind):
        ins = []
        for it in dma_tile(kind, (S_RD, 0), (S_GOFF, 0), None): ins += it[0] + [it[1]]
        return ins
    def qk_list(jq):
        out = []
        for j in range(4):
            for kt in range(2):
                d = vr(sbuf(jq) + 4*kt, 4)
                cop = vr(NEG + 4*jq, 4) if j == 0 else d
                out.append(f"{MF} {d}, {vr(KF + (kt*4 + j)*4, 4)}, {qf(j, jq)}, {cop}")
        return out
    def pv_list(jq):
        return [f"{MF} {ar(oacc(T, jq), 4)}, {vr(VF + 4*T, 4)}, {vr(pbuf(jq), 4)}, {ar(oacc(T, jq), 4)}" for T in range(8)]
    def softmax(jq):
        Sb = sbuf(jq); Pb = pbuf(jq)
        T = [V_T + i for i in range(4)]
        ops = []
        def e(k):
            if not C.prescale: ops.append((f"v_mul_f32 v{T[k%4]}, s{S_SCALE}, v{Sb+k}", 4))
        def x(k): ops.append((f"v_exp_f32 v{T[k%4]}, v{(Sb+k) if C.prescale else T[k%4]}", 8))
        e(0); e(1); x(0); x(1)
        for j in range(4):
            if 2*j+2 < 8:
                e(2*j+2); e(2*j+3); x(2*j+2); x(2*j+3)
            else: ops.append(("s_nop 0", 4))
            A_, B_ = T[(2*j) % 4], T[(2*j+1) % 4]
            if j == 0: ops.append((f"v_add_f32 v{V_TS}, v{A_}, v{B_}", 4))
            else:
                ops.append((f"v_add_f32 v{V_TS}, v{V_TS}, v{A_}", 4))
                ops.append((f"v_add_f32 v{V_TS}, v{V_TS}, v{B_}", 4))
            ops.append((f"v_cvt_pk_bf16_f32 v{Pb+j}, v{A_}, v{B_}", 4))
        return ops
    def a_phase(NS, sfx):
        a(f"s_add_u32 s{S_WREND}, s{S_WR}, {NS*8192}")
        for i_ in range(2, NS):
            for it in dma_tile("K" if i_ % 2 == 0 else "V", (S_WR, i_*8192), (None, (i_ // 2)*8192), ("kv", i_)): emit_item(it)
        VW = (NS - 1)*8
        kindA = "K" if NS % 2 == 0 else "V"
        kindB = "V" if NS % 2 == 0 else "K"
        offA = lambda t1: ((2*t1 + NS) // 2)*8192
        offB = lambda t1: ((2*t1 + 1 + NS) // 2)*8192
        a(f"s_mov_b32 s{S_RD}, s{S_WR}")
        a(f"s_waitcnt vmcnt({VW + 2})")
        for o in kaddr(): a(o)
        for o in kreads(): a(o)
        a("s_waitcnt lgkmcnt(0)")
        a(f"s_mov_b32 s{S_GOFF}, {offA(0)}")
        for o in refill(kindA): a(o)
        for o in adv_rd(): a(o)
        if not C.vrot:
            a(f"s_waitcnt vmcnt({VW})")
            for o in vaddr(): a(o)
            for o in vreads(): a(o)
            for m in qk_list(0): a(m)
            a("s_waitcnt lgkmcnt(0)")
            a(f"s_mov_b32 s{S_GOFF}, {offB(0)}")
            for o in refill(kindB): a(o)
            for o in adv_rd(): a(o)
            a(f"s_mov_b32 s{S_CNT}, 0")
            a(f"s_mov_b32 s{S_GOFF}, {offA(1)}")
        else:
            for m in qk_list(0): a(m)
            a(f"s_mov_b32 s{S_CNT}, 0")
            a(f"s_mov_b32 s{S_GOFF}, {offB(0)}")
        a("s_nop 7")
        a.label(f"L_A{sfx}")
        tr.lds = []; tr.vm = []
        S = Sched(tr, budget=8)
        blocks = []
        for jq in range(7):
            q0 = len(S.M)
            for m in (qk_list(jq+1) if jq < 6 else qk_list(0)): S.mfma(m)
            p0 = len(S.M)
            for m in pv_list(jq): S.mfma(m)
            blocks.append((q0, p0))
        for jq in range(7):
            rdy = -1 if jq == 0 else blocks[jq-1][1] + 2
            due = blocks[jq][1] - 2
            for ins, c_ in softmax(jq): S.fill(ins, ready=rdy, due=due, cost=c_)
            S.fill(f"v_cmp_nge_f32 vcc, s{S_THR}, v{V_TS}", ready=rdy, due=due)
            S.fill(f"s_or_b64 vcc, vcc, s[{S_FIRST}:{S_FIRST+1}]", ready=rdy, due=due)
            S.fill(f"s_cbranch_vccnz L_rare{sfx}_{jq}", ready=rdy, due=due)
            S.fill(f"L_rare{sfx}_{jq}_ret:", ready=rdy, due=due, cost=0)
            S.fill(f"v_add_f32 v{V_L+jq}, v{V_L+jq}, v{V_TS}", ready=rdy, due=due)
        gk = blocks[5][1]
        def kreload():
            tr(f"s_waitcnt vmcnt({VW})")
            for o in kaddr(): tr(o)
            for o in kreads(): tr(o)
        S.at(gk - 1, kreload, cost=100)
        dBA = offA(1) - offB(0)
        def kdone():
            tr("s_waitcnt lgkmcnt(0)")
            for o in refill(kindA): tr(o)
            if C.vrot and 8192 - dBA: tr(f"s_add_u32 s{S_GOFF}, s{S_GOFF}, {8192 - dBA}")
            for o in adv_rd(): tr(o)
        S.at(blocks[6][0] - 1, kdone, cost=100)
        if C.vrot:
            def vreload():
                tr(f"s_waitcnt vmcnt({VW})")
                for o in vaddr(): tr(o)
                for o in vreads(): tr(o)
            S.at(C.vgap, vreload, cost=100)
            def vdone():
                tr("s_waitcnt lgkmcnt(0)")
                for o in refill(kindB): tr(o)
                if dBA: tr(f"s_add_u32 s{S_GOFF}, s{S_GOFF}, {dBA}")
                for o in adv_rd(): tr(o)
            S.at(blocks[0][1] - 1, vdone, cost=100)
        S.emit()
        if not C.vrot:
            a(f"s_waitcnt vmcnt({VW})")
            for o in vaddr(): a(o)
            for o in vreads(): a(o)
            dAB = offB(1) - offA(1)
            if dAB: a(f"s_add_u32 s{S_GOFF}, s{S_GOFF}, {dAB}")
            a("s_waitcnt lgkmcnt(0)")
            for o in refill(kindB): a(o)
            if 8192 - dAB: a(f"s_add_u32 s{S_GOFF}, s{S_GOFF}, {8192 - dAB}")
            for o in adv_rd(): a(o)
        a(f"s_mov_b64 s[{S_FIRST}:{S_FIRST+1}], 0")
        a(f"s_add_u32 s{S_CNT}, s{S_CNT}, 1")
        a(f"s_cmp_lt_u32 s{S_CNT}, 16")
        a(f"s_cbranch_scc1 L_A{sfx}")
    versions = [(C.NS, "a")] if C.NS2 is None else [(C.NS, "a"), (C.NS2, "b")]
    if C.NS2 is None:
        a_phase(C.NS, "a")
    else:
        if C.xcc:
            a("s_getreg_b32 s6, hwreg(HW_REG_XCC_ID)")
            a("s_and_b32 s6, s6, 1")
        else:
            a("s_and_b32 s6, s2, 1")
        a("s_cmp_eq_u32 s6, 1")
        a("s_cbranch_scc1 L_Avb")
        a_phase(C.NS, "a")
        a("s_branch L_Adone")
        a.label("L_Avb")
        a_phase(C.NS2, "b")
        a.label("L_Adone")
    st()
    V_OW = 9; V_DO = 10; V_OA = 13; V_BA = 14
    u0, u1, u2 = 100, 101, 102
    a(f"v_lshlrev_b32 v{V_OW}, 4, v{V_LANE}")
    a(f"v_add_u32 v{V_BA}, 0, v{V_OW}")
    a(f"v_add_u32 v{V_OW}, s{S_WR}, v{V_OW}")
    a("s_mov_b32 s6, 0x2aaaaaab")
    for i in range(3):
        a(f"v_add_u32 v{u0}, {64*i}, v{V_LANE}")
        a(f"v_mul_hi_u32 v{u1}, v{u0}, s6")
        a(f"v_mul_u32_u24 v{u2}, 6, v{u1}")
        a(f"v_sub_u32 v{u2}, v{u0}, v{u2}")
        a(f"v_mul_u32_u24 v{u1}, 1152, v{u1}")
        a(f"v_lshl_add_u32 v{V_DO+i}, v{u2}, 4, v{u1}")
    a(f"v_lshrrev_b32 v{u0}, 4, v{V_LANE}")
    a(f"v_bfe_u32 v{u1}, v{V_LANE}, 2, 2")
    a(f"v_lshl_add_u32 v{u0}, v{u0}, 2, v{u1}")
    a(f"v_mul_u32_u24 v{u0}, 96, v{u0}")
    a(f"v_and_b32 v{u1}, 3, v{V_LANE}")
    a(f"v_lshl_add_u32 v{u0}, v{u1}, 3, v{u0}")
    a(f"s_add_u32 s6, s{S_WR}, 28672")
    a(f"v_add_u32 v{V_OA}, s6, v{u0}")
    a(f"s_mul_i32 s6, s{P+6}, {512*1152}")
    a(f"s_mul_i32 s7, s{S_WAVE}, 288")
    a(f"s_add_u32 s6, s6, s7")
    a(f"s_sub_u32 s7, {512*1152}, s7")
    srd(SRD_WO, WO, "s6", 0, "s7")
    if C.rot and not C.outg:
        a(f"s_mul_i32 s{S_OO}, s{S_WAVE}, {128*1152}")
        a(f"s_mov_b32 s62, s{S_WAVE}")
    else:
        a(f"s_mov_b32 s{S_OO}, 0")
    a("s_waitcnt vmcnt(0)")
    def dma_wo(pr):
        kap, gam = divmod(pr, 3) if not C.outg else (pr, 0)
        base = S_OO
        if C.rot and not C.outg and kap >= 4: base, kap = 61, kap - 4
        return [([f"s_add_u32 m0, s{S_WR}, {28672 + (pr % 4)*3072 + i*1024}"] + ([f"s_add_u32 s{S_T}, s{base}, {kap*32*1152 + gam*96}"] if i == 0 else ["s_nop 0"]),
                 f"buffer_load_dwordx4 v{V_DO+i}, s[{SRD_WO}:{SRD_WO+3}], s{S_T} offen lds", ("wo", pr)) for i in range(3)]
    tr.vm = []
    for pi in range(4):
        for it in dma_wo(pi): emit_item(it)
    for jq in range(7):
        for o in xlane("v_add_f32", V_L + jq, V_T): a(o)
        a(f"v_rcp_f32 v{V_L+jq}, v{V_L+jq}")
        for jp in range(4):
            b = 32 + ((jq*4 + jp) % 4)*16
            for k in range(4):
                a(f"v_accvgpr_read_b32 v{b+k}, a{oacc(2*jp, jq)+k}")
                a(f"v_accvgpr_read_b32 v{b+4+k}, a{oacc(2*jp+1, jq)+k}")
            for k in range(8): a(f"v_mul_f32 v{b+k}, v{b+k}, v{V_L+jq}")
            for k in range(4): a(f"v_cvt_pk_bf16_f32 v{b+8+k}, v{b+2*k}, v{b+2*k+1}")
            a(f"ds_write_b128 v{V_OW}, {vr(b+8, 4)} offset:{(jq*4 + jp)*1024}")
    a(f"s_lshl_b32 s6, s{P+2}, 4")
    a(f"s_add_u32 s6, s6, s{P+4}")
    a(f"s_lshl_b32 s6, s6, 3")
    a(f"s_add_u32 s6, s6, s{P+6}")
    a(f"s_lshl_b32 s6, s6, 2")
    a(f"s_add_u32 s6, s6, s{S_WAVE}")
    if C.outg:
        a(f"s_mul_i32 s6, s6, 33792")
        srd(SRD_WS, WS, "s6", 0, 33792)
    else:
        a(f"s_lshl_b32 s6, s6, 15")
        srd(SRD_WS, WS, "s6", 0, 32768)
    a("s_waitcnt lgkmcnt(0)")
    if not (C.rot and not C.outg): a("s_barrier")
    st()
    if C.outg:
        BF = [32, 60]; ACCS = [88, 172]; ABA = 0; NBO = 4
        S_BH, S_BN, S_ON = 61, 62, 63
        V_L16 = V_BA + 2
        a(f"v_mov_b32 v{V_L16}, v{V_BA}")
        def bread(kl, jq):
            reg = V_BA if kl < 4 else V_BA + 1
            tr.ds(f"ds_read_b128 {vr(BF[kl%2] + 4*jq, 4)}, v{reg} offset:{(jq*4 + kl % 4)*1024}", ("B", kl))
        def aread(tile, k):
            pi, cl = divmod(tile, 3)
            tr.ds(f"ds_read_b64_tr_b16 {ar(ABA + 4*(tile % NBO) + 2*k, 2)}, v{V_OA} offset:{(pi % 4)*3072 + cl*32 + k*1536}", ("A", tile))
        def dma_wo2(pr):
            base = S_OO if pr < 4 else S_ON
            kl = pr % 4
            return [([f"s_add_u32 m0, s{S_WR}, {28672 + kl*3072 + i*1024}"] + ([f"s_add_u32 s{S_T}, s{base}, {kl*32*1152}"] if i == 0 else []),
                     f"buffer_load_dwordx4 v{V_DO+i}, s[{SRD_WO}:{SRD_WO+3}], s{S_T} offen lds", ("wo", pr)) for i in range(3)]
        vm_entry_o = [("wo", p) for p in range(4) for _ in range(3)]
        def body(gam, first, last, fillers=None):
            AC = ACCS[gam % 2]
            tr.lds = [("A", t_) for t_ in range(1, AH) for _ in range(2)]
            tr.vm = list(vm_entry_o)
            S = Sched(tr)
            NT = 12
            for tile in range(NT):
                kl, cl = divmod(tile, 3)
                for jq in range(7):
                    d = vr(AC + (cl*7 + jq)*4, 4)
                    cop = "0" if (first and kl == 0) else d
                    S.mfma(f"{MF} {d}, {ar(ABA + 4*(tile % NBO), 4)}, {vr(BF[kl%2] + 4*jq, 4)}, {cop}")
            for tile in range(NT):
                kl, cl = divmod(tile, 3)
                g0 = tile*7
                nt_ = tile + 1
                if not (last and nt_ == NT):
                    need = [("A", nt_)] + ([("B", nt_ // 3)] if nt_ % 3 == 0 else [])
                    S.at(g0 + 6, (lambda need=need: tr.wait_lds(*need)))
                nx = tile + AH
                if not (last and nx >= NT):
                    if nx % 3 == 0: S.at(g0, (lambda nx=nx: tr.wait_vm(("wo", nx // 3))))
                    S.at(g0 + 1, (lambda nx=nx: aread(nx, 0)))
                    S.at(g0 + 2, (lambda nx=nx: aread(nx, 1)))
                if cl == 2 and not last:
                    for k, it in enumerate(dma_wo2(kl + 4)):
                        S.at(g0 + 3 + k, (lambda it=it: emit_item(it)), cost=(8 if k == 0 else 4))
                if cl == 0 and not (last and kl == 3):
                    for jq in range(7):
                        S.at(g0 + 3 + (jq % 4) + (jq // 4)*7, (lambda kl=kl, jq=jq: bread(kl + 1, jq)))
            if fillers:
                for o in fillers: S.fill(o, ready=2)
            S.emit()
        def adv(gam_next_wrap):
            pass
        def set_bases():
            a(f"v_add_u32 v{V_BA}, s{S_BH}, v{V_L16}")
            a(f"v_add_u32 v{V_BA+1}, s{S_BN}, v{V_L16}")
        def store_ops(gam):
            AC = ACCS[gam % 2]
            ops = []
            for i in range(11):
                b = 20 + 0
                d = (2 if i % 2 == 0 else 6)
                t0_ = AC + (2*i)*4
                ops.append(f"v_cvt_pk_bf16_f32 v{d}, v{t0_}, v{t0_+1}")
                ops.append(f"v_cvt_pk_bf16_f32 v{d+1}, v{t0_+2}, v{t0_+3}")
                if i < 10:
                    ops.append(f"v_cvt_pk_bf16_f32 v{d+2}, v{t0_+4}, v{t0_+5}")
                    ops.append(f"v_cvt_pk_bf16_f32 v{d+3}, v{t0_+6}, v{t0_+7}")
                else:
                    ops.append(f"v_mov_b32 v{d+2}, 0"); ops.append(f"v_mov_b32 v{d+3}, 0")
                sl = gam*11 + i
                ops.append(f"s_mov_b32 s{S_T2}, {(sl // 4)*4096}")
                ops.append(f"buffer_store_dwordx4 {vr(d, 4)}, v1, s[{SRD_WS}:{SRD_WS+3}], s{S_T2} offen offset:{(sl % 4)*1024}{C.fst if C.fuse else C.st_flags}")
            return ops
        a(f"v_lshlrev_b32 v1, 4, v{V_LANE}")
        a(f"s_mov_b32 s{S_BH}, 0")
        a(f"s_mov_b32 s{S_BN}, {WR}")
        a(f"s_mov_b32 s{S_OO}, 0")
        a(f"s_mov_b32 s{S_ON}, {128*1152}")
        set_bases()
        tr.lds = []
        for jq in range(7): bread(0, jq)
        a("s_waitcnt vmcnt(9)")
        for tile in range(AH):
            aread(tile, 0); aread(tile, 1)
        a("s_waitcnt lgkmcnt(0)")
        def advance(gam, hh_static=None):
            a(f"s_mov_b32 s{S_BH}, s{S_BN}")
            a(f"s_mov_b32 s{S_OO}, s{S_ON}")
            a(f"s_add_u32 s{S_BN}, s{S_BN}, {WR}")
            a(f"s_add_u32 s{S_ON}, s{S_ON}, {128*1152}")
            a(f"s_cmp_eq_u32 s{S_BN}, {4*WR}")
            a(f"s_cselect_b32 s{S_BN}, 0, s{S_BN}")
            a(f"s_cselect_b32 s{S_ON}, {(gam+1)*96}, s{S_ON}")
            set_bases()
        for gam in range(3):
            fl = store_ops(gam - 1) if gam else None
            body(gam, True, False, fl)
            advance(gam)
            a(f"s_mov_b32 s{S_CNT}, 0")
            nloop = 3 if gam < 2 else 2
            a.label(f"L_O{gam}")
            body(gam, False, False)
            advance(gam)
            a(f"s_add_u32 s{S_CNT}, s{S_CNT}, 1")
            a(f"s_cmp_lt_u32 s{S_CNT}, {nloop}")
            a(f"s_cbranch_scc1 L_O{gam}")
            if gam == 2:
                body(gam, False, True)
        st()
        a("s_nop 7"); a("s_nop 7")
        for o in store_ops(2): a(o)
    else:
        BF = [32, 60]; AB = 88; NBO = 4
        def oa(ct, jq): return (ct*7 + jq)*4
        def bread(kl, jq):
            reg = V_BA if kl < 4 else V_BA + 1
            tr.ds(f"ds_read_b128 {vr(BF[kl%2] + 4*jq, 4)}, v{reg} offset:{(jq*4 + kl % 4)*1024}", ("B", kl))
        def aread(tile, k):
            pi, cl = divmod(tile, 3)
            tr.ds(f"ds_read_b64_tr_b16 {vr(AB + 4*(tile % NBO) + 2*k, 2)}, v{V_OA} offset:{(pi % 4)*3072 + cl*32 + k*1536}", ("A", tile))
        vm_entry_o = [("wo", p) for p in range(4) for _ in range(3)]
        def out_body(first, last, extra_fill=None):
            tr.lds = [("A", t_) for t_ in range(1, AH) for _ in range(2)]
            tr.vm = list(vm_entry_o)
            S = Sched(tr)
            NT = 36
            for tile in range(NT):
                kl, ct = divmod(tile, 9)
                for jq in range(7):
                    cop = "0" if (first and kl == 0) else ar(oa(ct, jq), 4)
                    S.mfma(f"{MF} {ar(oa(ct, jq), 4)}, {vr(AB + 4*(tile % NBO), 4)}, {vr(BF[kl%2] + 4*jq, 4)}, {cop}")
            for tile in range(NT):
                kl, ct = divmod(tile, 9)
                g0 = tile*7
                nt_ = tile + 1
                if not (last and nt_ == NT):
                    need = [("A", nt_)] + ([("B", nt_ // 9)] if nt_ % 9 == 0 else [])
                    S.at(g0 + 6, (lambda need=need: tr.wait_lds(*need)))
                nx = tile + AH
                if not (last and nx >= NT):
                    if nx % 3 == 0: S.at(g0, (lambda nx=nx: tr.wait_vm(("wo", nx // 3))))
                    S.at(g0 + 1, (lambda nx=nx: aread(nx, 0)))
                    S.at(g0 + 2, (lambda nx=nx: aread(nx, 1)))
                if tile % 3 == 2:
                    pi = tile // 3
                    if not (last and pi + 4 >= 12):
                        for k, it in enumerate(dma_wo(pi + 4)):
                            S.at(g0 + 3 + k, (lambda it=it: emit_item(it)), cost=12)
                if C.rot and first and kl == 3 and ct == 4:
                    S.at(g0 + 2, (lambda: tr("s_barrier")), cost=4)
                if ct == 4 and not (last and kl == 3):
                    for jq in range(7):
                        S.at(g0 + 3 + (jq % 4) + (jq // 4)*7, (lambda kl=kl, jq=jq: bread(kl + 1, jq)))
            if extra_fill: extra_fill(S)
            S.emit()
        V_L16 = V_BA + 2
        def set_heads():
            a("s_add_u32 s63, s62, 1")
            a("s_and_b32 s63, s63, 3")
            a(f"s_mul_i32 s61, s63, {128*1152}")
            a(f"s_mul_i32 s6, s62, {WR}")
            a(f"s_mul_i32 s7, s63, {WR}")
            a(f"v_add_u32 v{V_BA}, s6, v{V_L16}")
            a(f"v_add_u32 v{V_BA+1}, s7, v{V_L16}")
        if C.rot:
            a(f"v_mov_b32 v{V_L16}, v{V_BA}")
            set_heads()
        else:
            a(f"v_add_u32 v{V_BA+1}, {WR}, v{V_BA}")
        tr.lds = []
        for jq in range(7): bread(0, jq)
        a("s_waitcnt vmcnt(9)")
        for tile in range(AH):
            aread(tile, 0); aread(tile, 1)
        a("s_waitcnt lgkmcnt(0)")
        def adv_head():
            if C.rot:
                a(f"s_mov_b32 s{S_OO}, s61")
                a("s_mov_b32 s62, s63")
                set_heads()
            else:
                a(f"s_add_u32 s{S_OO}, s{S_OO}, {128*1152}")
                a(f"v_add_u32 v{V_BA}, {WR}, v{V_BA}")
                a(f"v_add_u32 v{V_BA+1}, {WR}, v{V_BA+1}")
        out_body(True, False)
        adv_head()
        a(f"s_mov_b32 s{S_CNT}, 0")
        a.label("L_O")
        out_body(False, False)
        adv_head()
        a(f"s_add_u32 s{S_CNT}, s{S_CNT}, 1")
        a(f"s_cmp_lt_u32 s{S_CNT}, 2")
        a("s_cbranch_scc1 L_O")
        a(f"v_lshlrev_b32 v1, 4, v{V_LANE}")
        done_pairs = [0]
        stf = C.fst if C.fuse else C.st_flags
        def store_pair(i):
            b = 104 + (i % 4)*16
            ops = []
            nt_ = 2 if i < 31 else 1
            for k in range(4*nt_): ops.append(f"v_accvgpr_read_b32 v{b+k}, a{8*i+k}")
            for k in range(2*nt_): ops.append(f"v_cvt_pk_bf16_f32 v{b+8+k}, v{b+2*k}, v{b+2*k+1}")
            if nt_ == 1:
                ops.append(f"v_mov_b32 v{b+10}, 0"); ops.append(f"v_mov_b32 v{b+11}, 0")
            ops.append(f"s_mov_b32 s{S_T2}, {(i // 4)*4096}")
            ops.append(f"buffer_store_dwordx4 {vr(b+8, 4)}, v1, s[{SRD_WS}:{SRD_WS+3}], s{S_T2} offen offset:{(i % 4)*1024}{stf}")
            return ops
        tailst = []
        def fill_stores(S):
            for i in range(32):
                tl = min(2*i + 1, 62)
                ct = tl // 7
                rdy = (27 + ct)*7 + (tl % 7) + 3
                for o in store_pair(i):
                    if rdy < len(S.M) - 1: S.fill(o, ready=rdy)
                    else: tailst.append(o)
        out_body(False, True, fill_stores)
        st()
        a("s_nop 7"); a("s_nop 7")
        for o in tailst: a(o)
    if C.fuse:
        OUTP, DBG = 88, 90
        a(f"s_load_dwordx2 s[{OUTP}:{OUTP+1}], s[0:1], 80")
        a(f"s_load_dwordx2 s[{DBG}:{DBG+1}], s[0:1], 88")
        a(f"s_lshl_b32 s{S_T}, s{P+2}, 4")
        a(f"s_add_u32 s{S_T}, s{S_T}, s{P+4}")
        a(f"s_lshl_b32 s{S_T2}, s{S_T}, 2")
        if C.stamp: a("s_memrealtime s[96:97]")
        a("s_waitcnt vmcnt(0) lgkmcnt(0)")
        if C.stamp: a("s_memrealtime s[98:99]")
        a("s_barrier")
        a(f"s_cmp_eq_u32 s{S_WAVE}, 0")
        a("s_cbranch_scc0 L_wait_done")
        a(f"v_mov_b32 v2, s{S_T2}")
        a("v_mov_b32 v3, 1")
        a(f"v_cmp_eq_u32 vcc, 0, v{V_LANE}")
        a("s_and_saveexec_b64 s[4:5], vcc")
        a(f"global_atomic_add v2, v3, s[{DBG}:{DBG+1}] sc1")
        a.label("L_poll")
        a(f"global_load_dword v4, v2, s[{DBG}:{DBG+1}] sc1")
        a("s_waitcnt vmcnt(0)")
        a("v_cmp_gt_u32 vcc, 8, v4")
        a("s_cbranch_vccz L_poll_done")
        a("s_sleep 2")
        a("s_branch L_poll")
        a.label("L_poll_done")
        a("s_mov_b64 exec, s[4:5]")
        a.label("L_wait_done")
        a("s_barrier")
        if C.stamp: a("s_memrealtime s[60:61]")
        if C.outg:
            RS = 92
            a(f"s_mov_b32 s{RS}, s{WS}")
            a(f"s_and_b32 s{RS+1}, s{WS+1}, 0xffff")
            a(f"s_mov_b32 s{RS+2}, {1024*33792}")
            a(f"s_mov_b32 s{RS+3}, 0x20000")
            OS = 8
            a(f"s_mov_b32 s{OS}, s{OUTP}")
            a(f"s_and_b32 s{OS+1}, s{OUTP+1}, 0xffff")
            a(f"s_mov_b32 s{OS+2}, {16*112*1152*2}")
            a(f"s_mov_b32 s{OS+3}, 0x20000")
            a(f"s_lshl_b32 s12, s{P+6}, 2")
            a(f"s_add_u32 s12, s12, s{S_WAVE}")
            a(f"v_lshlrev_b32 v5, 4, v{V_LANE}")
            a(f"s_mul_i32 s15, s{S_T}, {32*33792}")
            NTK = 5
            for k in range(NTK):
                a(f"s_add_u32 s13, s12, {32*k}")
                a(f"s_mul_i32 s14, s13, {(2**16 + 32)//33}")
                a("s_lshr_b32 s14, s14, 16")
                a("s_mul_i32 s16, s14, 33")
                a("s_sub_u32 s16, s13, s16")
                a(f"s_mul_i32 s17, s14, 33792")
                a("s_lshl_b32 s18, s16, 10")
                a("s_add_u32 s17, s17, s18")
                a("s_add_u32 s17, s17, s15")
                a("s_cmp_ge_u32 s13, 132")
                a("s_cselect_b32 s17, 0x7f000000, s17")
                a(f"s_mov_b32 s{36+2*k}, s14") if False else None
                a(f"v_writelane_b32 v10, s14, {k}")
                a(f"v_writelane_b32 v10, s16, {8+k}")
                a(f"v_writelane_b32 v10, s13, {16+k}")
                for p_ in range(8):
                    r0 = 32 + (k*8 + p_)*4
                    a(f"buffer_load_dwordx4 v[{r0}:{r0+3}], v5, s[{RS}:{RS+3}], s17 offen{C.fld}")
                    if p_ < 7: a(f"s_add_u32 s17, s17, {4*33792}")
            a(f"v_and_b32 v3, 15, v{V_LANE}")
            a(f"v_lshrrev_b32 v4, 4, v{V_LANE}")
            a(f"s_mul_i32 s18, s{P+4}, 112")
            a("v_add_u32 v6, s18, v3")
            a("s_movk_i32 s19, 2304")
            a("v_mul_lo_u32 v6, v6, s19")
            a("v_lshl_add_u32 v6, v4, 3, v6")
            a(f"s_mul_i32 s19, s{P+2}, 1152")
            for k in range(NTK):
                a(f"s_waitcnt vmcnt({(NTK-1-k)*8 + 2*k})")
                acc = 200 + (k % 2)*8
                for p_ in range(8):
                    for q in range(4):
                        src = 32 + (k*8 + p_)*4 + q
                        if p_ == 0:
                            a(f"v_lshlrev_b32 v{acc+2*q}, 16, v{src}")
                            a(f"v_and_b32 v{acc+2*q+1}, 0xffff0000, v{src}")
                        else:
                            a(f"v_lshlrev_b32 v8, 16, v{src}")
                            a(f"v_and_b32 v9, 0xffff0000, v{src}")
                            a(f"v_add_f32 v{acc+2*q}, v{acc+2*q}, v8")
                            a(f"v_add_f32 v{acc+2*q+1}, v{acc+2*q+1}, v9")
                o_ = 220 + (k % 2)*4
                for q in range(4): a(f"v_cvt_pk_bf16_f32 v{o_+q}, v{acc+2*q}, v{acc+2*q+1}")
                a(f"v_readlane_b32 s14, v10, {k}")
                a(f"v_readlane_b32 s16, v10, {8+k}")
                a(f"v_readlane_b32 s13, v10, {16+k}")
                a("s_nop 3")
                a(f"s_mul_i32 s20, s16, {(2**16 + 10)//11}")
                a("s_lshr_b32 s20, s20, 16")
                a("s_mul_i32 s21, s20, 11")
                a("s_sub_u32 s21, s16, s21")
                a("s_mul_i32 s20, s20, 96")
                a("s_mul_i32 s22, s14, 288")
                a("s_add_u32 s20, s20, s22")
                a("s_add_u32 s20, s20, s19")
                for h in range(2):
                    a("s_lshl_b32 s22, s21, 1")
                    if h: a("s_add_u32 s22, s22, 1")
                    a(f"s_mul_i32 s23, s22, {(2**16 + 6)//7}")
                    a("s_lshr_b32 s23, s23, 16")
                    a("s_mul_i32 s24, s23, 7")
                    a("s_sub_u32 s24, s22, s24")
                    a(f"s_mul_i32 s24, s24, {16*2304}")
                    a("s_lshl_b32 s23, s23, 5")
                    a("s_add_u32 s24, s24, s23")
                    a("s_add_u32 s24, s24, s20")
                    a("s_cmp_eq_u32 s22, 21")
                    a("s_cselect_b32 s24, 0x7f000000, s24")
                    a("s_cmp_ge_u32 s13, 132")
                    a("s_cselect_b32 s24, 0x7f000000, s24")
                    a(f"buffer_store_dwordx2 v[{o_+2*h}:{o_+2*h+1}], v6, s[{OS}:{OS+3}], s24 offen")
        else:
            RS = 92
            a(f"s_mov_b32 s{RS}, s{WS}")
            a(f"s_and_b32 s{RS+1}, s{WS+1}, 0xffff")
            a(f"s_mov_b32 s{RS+2}, {256*131072}")
            a(f"s_mov_b32 s{RS+3}, 0x20000")
            OS = 8
            a(f"s_mov_b32 s{OS}, s{OUTP}")
            a(f"s_and_b32 s{OS+1}, s{OUTP+1}, 0xffff")
            a(f"s_mov_b32 s{OS+2}, {16*112*1152*2}")
            a(f"s_mov_b32 s{OS+3}, 0x20000")
            a(f"s_lshl_b32 s12, s{P+6}, 2")
            a(f"s_add_u32 s12, s12, s{S_WAVE}")
            a(f"s_lshl_b32 s12, s12, 2")
            a(f"s_lshr_b32 s13, s12, 5")
            a(f"s_and_b32 s14, s12, 31")
            a(f"s_lshl_b32 s15, s{S_T}, 20")
            a(f"s_lshl_b32 s16, s13, 15")
            a(f"s_add_u32 s15, s15, s16")
            a(f"s_lshl_b32 s16, s14, 10")
            a(f"s_add_u32 s15, s15, s16")
            a(f"v_lshlrev_b32 v5, 4, v{V_LANE}")
            for p_ in range(8):
                for k in range(4):
                    r0 = 32 + (k*8 + p_)*4
                    a(f"buffer_load_dwordx4 v[{r0}:{r0+3}], v5, s[{RS}:{RS+3}], s15 offen offset:{k*1024}{C.fld}")
                if p_ < 7: a("s_add_u32 s15, s15, 131072")
            a(f"v_and_b32 v3, 15, v{V_LANE}")
            a(f"v_lshrrev_b32 v4, 4, v{V_LANE}")
            a(f"s_mul_i32 s18, s{P+4}, 112")
            a("v_add_u32 v6, s18, v3")
            a("s_movk_i32 s19, 2304")
            a("v_mul_lo_u32 v6, v6, s19")
            a("v_lshl_add_u32 v6, v4, 3, v6")
            a(f"s_mul_i32 s19, s{P+2}, 1152")
            a("s_mul_i32 s20, s13, 288")
            a("s_add_u32 s19, s19, s20")
            for k in range(4):
                pass
            a("s_waitcnt vmcnt(0)")
            if C.stamp: a("s_memrealtime s[62:63]")
            for k in range(4):
                acc = 160 + k*8
                for p_ in range(8):
                    for q in range(4):
                        src = 32 + (k*8 + p_)*4 + q
                        if p_ == 0:
                            a(f"v_lshlrev_b32 v{acc+2*q}, 16, v{src}")
                            a(f"v_and_b32 v{acc+2*q+1}, 0xffff0000, v{src}")
                        else:
                            a(f"v_lshlrev_b32 v8, 16, v{src}")
                            a(f"v_and_b32 v9, 0xffff0000, v{src}")
                            a(f"v_add_f32 v{acc+2*q}, v{acc+2*q}, v8")
                            a(f"v_add_f32 v{acc+2*q+1}, v{acc+2*q+1}, v9")
                for q in range(4): a(f"v_cvt_pk_bf16_f32 v{200+4*k+q}, v{acc+2*q}, v{acc+2*q+1}")
                for h in range(2):
                    a(f"s_add_u32 s21, s14, {k}")
                    a("s_lshl_b32 s22, s21, 1")
                    if h: a("s_add_u32 s22, s22, 1")
                    a(f"s_mul_i32 s23, s22, {(2**16 + 6)//7}")
                    a("s_lshr_b32 s23, s23, 16")
                    a("s_mul_i32 s24, s23, 7")
                    a("s_sub_u32 s24, s22, s24")
                    a(f"s_mul_i32 s24, s24, {16*2304}")
                    a("s_lshl_b32 s23, s23, 5")
                    a("s_add_u32 s24, s24, s23")
                    a("s_add_u32 s24, s24, s19")
                    a("s_cmp_eq_u32 s22, 63")
                    a("s_cselect_b32 s24, 0x7f000000, s24")
                    a(f"buffer_store_dwordx2 v[{200+4*k+2*h}:{201+4*k+2*h}], v6, s[{OS}:{OS+3}], s24 offen")
    if C.stamp:
        st()
        a("s_waitcnt vmcnt(0)")
        st()
        a("s_memrealtime s[68:69]")
        a("s_waitcnt lgkmcnt(0)")
        a(f"v_writelane_b32 v{V_STAMP}, s68, 63")
        a(f"v_writelane_b32 v{V_STAMP}, s70, 62")
        if not C.fuse:
            for k in range(5): a(f"v_writelane_b32 v{V_STAMP}, s{88+2*k}, {48+k}")
        else:
            for k, r_ in enumerate((96, 98, 60, 62)): a(f"v_writelane_b32 v{V_STAMP}, s{r_}, {48+k}")
        a(f"s_mov_b32 s{SRD_WS}, s{WS}")
        a(f"s_and_b32 s{SRD_WS+1}, s{WS+1}, 0xffff")
        a(f"s_mov_b32 s{SRD_WS+2}, 0x4000000")
        a(f"s_lshl_b32 s{S_T}, s2, 2")
        a(f"s_add_u32 s{S_T}, s{S_T}, s{S_WAVE}")
        a(f"s_lshl_b32 s{S_T}, s{S_T}, 8")
        a(f"s_add_u32 s{S_T}, s{S_T}, {40<<20}")
        a(f"v_lshlrev_b32 v1, 2, v{V_LANE}")
        a(f"buffer_store_dword v{V_STAMP}, v1, s[{SRD_WS}:{SRD_WS+3}], s{S_T} offen")
    a("s_endpgm")
    for _, sfx in versions:
        for jq in range(7):
            Sb = sbuf(jq)
            a.label(f"L_rare{sfx}_{jq}")
            a("s_nop 7")
            d, tm = V_T, V_T + 1
            a(f"v_max3_f32 v{d}, v{Sb}, v{Sb+1}, v{Sb+2}")
            a(f"v_max3_f32 v{tm}, v{Sb+3}, v{Sb+4}, v{Sb+5}")
            a(f"v_max3_f32 v{d}, v{d}, v{Sb+6}, v{Sb+7}")
            a(f"v_max_f32 v{d}, v{d}, v{tm}")
            for o in xlane("v_max_f32", d, tm): a(o)
            a(f"s_cmp_eq_u32 s{S_CNT}, 0")
            a(f"s_cbranch_scc1 L_rare{sfx}_{jq}_first")
            a(f"v_max_f32 v{d}, 0, v{d}")
            a(f"v_sub_f32 v{tm}, 0, v{d}") if C.prescale else a(f"v_mul_f32 v{tm}, s{S_NSC}, v{d}")
            a(f"v_exp_f32 v{tm}, v{tm}")
            a("s_nop 0")
            for T in range(8):
                for k in range(4):
                    a(f"v_accvgpr_read_b32 v{V_T+2}, a{oacc(T, jq)+k}")
                    a(f"v_mul_f32 v{V_T+2}, v{V_T+2}, v{tm}")
                    a(f"v_accvgpr_write_b32 a{oacc(T, jq)+k}, v{V_T+2}")
            a(f"v_mul_f32 v{V_L+jq}, v{V_L+jq}, v{tm}")
            a.label(f"L_rare{sfx}_{jq}_first")
            for k in range(8): a(f"v_sub_f32 v{Sb+k}, v{Sb+k}, v{d}")
            for k in range(4): a(f"v_sub_f32 v{NEG+4*jq+k}, v{NEG+4*jq+k}, v{d}")
            for ins, c_ in softmax(jq): a(ins)
            a("s_nop 1")
            a(f"s_branch L_rare{sfx}_{jq}_ret")
    a.label("L_exit")
    a("s_endpgm")
    a.label("L_code_end")
    return a.text()

def gen_reduce2():
    a = Asm()
    a("s_cmp_ge_u32 s2, 1056")
    a("s_cbranch_scc1 R_exit")
    a("s_load_dwordx2 s[4:5], s[0:1], 96")
    a("s_load_dwordx2 s[6:7], s[0:1], 80")
    a("v_lshrrev_b32 v1, 6, v0")
    a("v_and_b32 v2, 63, v0")
    a("v_readfirstlane_b32 s8, v1")
    a("s_lshl_b32 s9, s2, 2")
    a("s_add_u32 s9, s9, s8")
    a(f"s_mul_hi_u32 s11, s9, {(2**32 + 32)//33}")
    a("s_mul_i32 s12, s11, 33")
    a("s_sub_u32 s12, s9, s12")
    a("s_and_b32 s13, s11, 3")
    a("s_lshr_b32 s14, s11, 2")
    a(f"s_mul_i32 s15, s14, {32*33792}")
    a(f"s_mul_i32 s16, s13, 33792")
    a("s_add_u32 s15, s15, s16")
    a("s_lshl_b32 s16, s12, 10")
    a("s_add_u32 s15, s15, s16")
    a("s_waitcnt lgkmcnt(0)")
    a("s_mov_b32 s20, s4")
    a("s_and_b32 s21, s5, 0xffff")
    a(f"s_mov_b32 s22, {1024*33792}")
    a("s_mov_b32 s23, 0x20000")
    a("s_mov_b32 s24, s6")
    a("s_and_b32 s25, s7, 0xffff")
    a(f"s_mov_b32 s26, {16*112*1152*2}")
    a("s_mov_b32 s27, 0x20000")
    a("v_lshlrev_b32 v5, 4, v2")
    for p in range(8):
        a(f"buffer_load_dwordx4 v[{16+4*p}:{19+4*p}], v5, s[20:23], s15 offen")
        if p < 7: a(f"s_add_u32 s15, s15, {4*33792}")
    a("v_and_b32 v3, 15, v2")
    a("v_lshrrev_b32 v4, 4, v2")
    a("s_and_b32 s18, s14, 15")
    a("s_lshr_b32 s19, s14, 4")
    a("s_mul_i32 s18, s18, 112")
    a("s_movk_i32 s28, 2304")
    a("v_add_u32 v6, s18, v3")
    a("v_mul_lo_u32 v6, v6, s28")
    a("v_lshlrev_b32 v4, 3, v4")
    a("v_add_u32 v6, v6, v4")
    a("s_mul_i32 s19, s19, 1152")
    a("s_mul_i32 s29, s13, 288")
    a("s_add_u32 s19, s19, s29")
    a(f"s_mul_i32 s35, s12, {(2**16 + 10)//11}")
    a("s_lshr_b32 s35, s35, 16")
    a("s_mul_i32 s36, s35, 11")
    a("s_sub_u32 s36, s12, s36")
    a("s_mul_i32 s35, s35, 96")
    a("s_add_u32 s19, s19, s35")
    for k in range(2):
        a(f"s_lshl_b32 s30, s36, 1")
        if k: a("s_add_u32 s30, s30, 1")
        a(f"s_mul_i32 s31, s30, {(2**16 + 6)//7}")
        a("s_lshr_b32 s31, s31, 16")
        a("s_mul_i32 s32, s31, 7")
        a("s_sub_u32 s32, s30, s32")
        a(f"s_mul_i32 s32, s32, {16*2304}")
        a("s_lshl_b32 s31, s31, 5")
        a("s_add_u32 s32, s32, s31")
        a(f"s_add_u32 s{33+k}, s32, s19")
    a("s_cmp_eq_u32 s36, 10")
    a("s_cselect_b32 s34, 0x7f000000, s34")
    for p in range(8):
        a(f"s_waitcnt vmcnt({7-p})")
        for k in range(4):
            src = 16 + 4*p + k
            if p == 0:
                a(f"v_lshlrev_b32 v{48+2*k}, 16, v{src}")
                a(f"v_and_b32 v{49+2*k}, 0xffff0000, v{src}")
            else:
                a(f"v_lshlrev_b32 v8, 16, v{src}")
                a(f"v_and_b32 v9, 0xffff0000, v{src}")
                a(f"v_add_f32 v{48+2*k}, v{48+2*k}, v8")
                a(f"v_add_f32 v{49+2*k}, v{49+2*k}, v9")
    for k in range(4): a(f"v_cvt_pk_bf16_f32 v{56+k}, v{48+2*k}, v{49+2*k}")
    a("buffer_store_dwordx2 v[56:57], v6, s[24:27], s33 offen")
    a("buffer_store_dwordx2 v[58:59], v6, s[24:27], s34 offen")
    a.label("R_exit")
    a("s_endpgm")
    return a.text()

def generate(path):
    body = gen_main()
    red = gen_reduce2() if C.outg else gen_reduce()
    if C.fuse:
        txt = make_file([(KN, 256, 256, 163840)], [(KN, body, 512, 102, 256)])
        open(path, "w").write(txt)
        return
    ll = [("attn_main_kernel", 256, 256, 163840), ("attn_reduce_kernel", 1056 if C.outg else 1024, 256, 0)]
    if C.only == "main": ll = ll[:1]
    txt = make_file(ll, [("attn_main_kernel", body, 512, 100, 256), ("attn_reduce_kernel", red, 64, 40, 64)])
    open(path, "w").write(txt)

if __name__ == "__main__":
    out = sys.argv[1] if len(sys.argv) > 1 else "w3.s"
    for kv in sys.argv[2:]:
        k, v = kv.split("=")
        setattr(C, k, eval(v))
    generate(out)
```
